```python
import torch

def _softmax(x, axis=-1):
    return torch.softmax(x, dim=axis)
def _gelu(x):
    return torch.nn.functional.gelu(x, approximate="tanh")
def _silu(x):
    return torch.nn.functional.silu(x)
def _sigmoid(x):
    return torch.sigmoid(x)
def _layernorm(x, axis=-1, eps=1e-5):
    m = x.mean(dim=axis, keepdim=True)
    v = x.var(dim=axis, keepdim=True, unbiased=False)
    return (x - m) / torch.sqrt(v + eps)
def _scatter_add(tgt, idx, src, axis=0):
    return tgt.clone().index_add_(axis, idx, src)
def _segment_sum(src, seg, n):
    out = torch.zeros((n,) + src.shape[1:], dtype=src.dtype)
    return out.index_add_(0, seg, src)
def _pad(x, pw):
    flat = tuple(v for pair in reversed(pw) for v in pair)
    return torch.nn.functional.pad(x, flat)

kernel_name = 'standalone__glu_gated_geglu__prompt'

def setup_inputs():

    _w = (lambda a: (lambda t: t.to(torch.bfloat16) if t.is_floating_point() else t)(torch.as_tensor(a)))
    B, S, Dm, Df = 1, 2048, 512, 1376
    return {
        "x": _w((lambda *s: torch.randn(*s, dtype=torch.bfloat16) * 0.05)(B, S, Dm)),
        "w_gate": _w((lambda *s: torch.randn(*s, dtype=torch.bfloat16) * 0.05)(Dm, Df) * (Dm ** -0.5)),
        "w_up": _w((lambda *s: torch.randn(*s, dtype=torch.bfloat16) * 0.05)(Dm, Df) * (Dm ** -0.5)),
        "w_down": _w((lambda *s: torch.randn(*s, dtype=torch.bfloat16) * 0.05)(Df, Dm) * (Df ** -0.5)),
    }

def reference(x, w_gate, w_up, w_down):
    g = torch.einsum("bsd,df->bsf", x, w_gate)
    u = torch.einsum("bsd,df->bsf", x, w_up)
    h = _gelu(g) * u
    return torch.einsum("bsf,fd->bsd", h, w_down)
```

```python
import sys, struct

def f2u(x): return struct.unpack("<I", struct.pack("<f", x))[0]

class Asm:
    def __init__(self):
        self.lines = []
        self.lds = []
        self.vm = []
    def e(self, s): self.lines.append("    " + s)
    def label(self, s): self.lines.append(s + ":")
    def c(self, s): self.lines.append("    ; " + s)
    def lds_op(self, s, tag=None):
        self.e(s); self.lds.append(tag)
    def vm_op(self, s, tag=None):
        self.e(s); self.vm.append(tag)
    def _need(self, q, tags):
        last = -1
        for i, t in enumerate(q):
            if t in tags: last = i
        return last
    def wait(self, lds_tags=(), vm_tags=(), force=False):
        parts = []
        if vm_tags:
            last = self._need(self.vm, vm_tags)
            if last >= 0:
                n = len(self.vm) - 1 - last
                assert n <= 63, n
                parts.append(f"vmcnt({n})")
                self.vm = self.vm[last + 1:]
        if lds_tags:
            last = self._need(self.lds, lds_tags)
            if last >= 0:
                n = len(self.lds) - 1 - last
                n = min(n, 15)
                parts.append(f"lgkmcnt({n})")
                self.lds = self.lds[len(self.lds) - n:] if n else []
        if parts: self.e("s_waitcnt " + " ".join(parts))
    def wait_all_lds(self):
        self.e("s_waitcnt lgkmcnt(0)"); self.lds = []
    def wait_all_vm(self):
        self.e("s_waitcnt vmcnt(0)"); self.vm = []
    def text(self): return "\n".join(self.lines)

H_BYTES = 43 * 128 * 1024
C1 = -2.0 * 1.4426950408889634 * 0.7978845608028654
C2 = C1 * 0.044715

def srd(a, d, lo, hi, nbytes):
    a.e(f"s_mov_b32 s{d}, s{lo}")
    a.e(f"s_and_b32 s{d+1}, s{hi}, 0xffff")
    a.e(f"s_mov_b32 s{d+2}, {nbytes}")
    a.e(f"s_mov_b32 s{d+3}, 0x20000")

def kernel1():
    a = Asm()
    a.label("k1_kernel")
    a.e("s_cmp_ge_u32 s2, 256")
    a.e("s_cbranch_scc1 K1_END")
    a.e("s_load_dwordx4 s[4:7], s[0:1], 0")
    a.e("s_load_dwordx2 s[24:25], s[0:1], 16")
    a.e("s_load_dwordx2 s[26:27], s[0:1], 48")
    a.e("s_and_b32 s33, s2, 7")
    a.e("s_lshr_b32 s34, s2, 3")
    a.e("s_and_b32 s28, s33, 1")
    a.e("s_lshl_b32 s28, s28, 3")
    a.e("s_and_b32 s35, s34, 7")
    a.e("s_add_u32 s28, s28, s35")
    a.e("s_lshr_b32 s29, s33, 1")
    a.e("s_lshl_b32 s29, s29, 2")
    a.e("s_lshr_b32 s35, s34, 3")
    a.e("s_add_u32 s29, s29, s35")
    a.e("s_mul_i32 s30, s29, 43")
    a.e("s_add_u32 s31, s30, 43")
    a.e("s_lshr_b32 s30, s30, 4")
    a.e("s_lshr_b32 s31, s31, 4")
    a.e("s_sub_u32 s31, s31, s30")
    a.e("v_and_b32 v1, 63, v0")
    a.e("v_lshrrev_b32 v2, 6, v0")
    a.e("s_nop 0")
    a.e("v_readfirstlane_b32 s32, v2")
    a.e("v_lshrrev_b32 v20, 3, v1")
    a.e("v_lshrrev_b32 v21, 4, v1")
    a.e("v_and_b32 v22, 7, v1")
    a.e("v_xor_b32 v22, v22, v21")
    a.e("v_xor_b32 v23, 4, v22")
    a.e("s_lshl_b32 s33, s28, 7")
    a.e("s_lshl_b32 s34, s32, 5")
    a.e("s_add_u32 s33, s33, s34")
    a.e("s_lshl_b32 s33, s33, 10")
    a.e("v_lshlrev_b32 v20, 10, v20")
    a.e("v_add_u32 v20, s33, v20")
    a.e("v_lshl_add_u32 v2, v22, 4, v20")
    a.e("v_lshl_add_u32 v3, v23, 4, v20")
    a.e("v_add_u32 v3, 8192, v3")
    a.e("v_add_u32 v4, 16384, v2")
    a.e("v_add_u32 v5, 16384, v3")
    a.e("s_mul_i32 s33, s32, 44032")
    a.e("s_lshl_b32 s34, s30, 6")
    a.e("s_add_u32 s33, s33, s34")
    a.e("s_movk_i32 s34, 2752")
    for i in range(3):
        a.e(f"v_add_u32 v20, {64*i}, v1")
        a.e("v_mul_u32_u24 v21, 171, v20")
        a.e("v_lshrrev_b32 v21, 11, v21")
        a.e("v_mul_u32_u24 v22, 12, v21")
        a.e("v_sub_u32 v22, v20, v22")
        a.e("v_mul_u32_u24 v21, s34, v21")
        a.e("v_lshl_add_u32 v21, v22, 4, v21")
        a.e(f"v_add_u32 v{6+i}, s33, v21")
    a.e("v_and_b32 v20, 31, v1")
    a.e("v_lshrrev_b32 v21, 5, v1")
    a.e("v_bfe_u32 v22, v20, 1, 3")
    a.e("v_xor_b32 v22, v22, v21")
    a.e("v_lshlrev_b32 v22, 4, v22")
    a.e("v_lshl_add_u32 v22, v20, 7, v22")
    a.e("s_lshl_b32 s33, s32, 12")
    a.e("v_add_u32 v9, s33, v22")
    for s in range(1, 4):
        a.e(f"v_xor_b32 v{9+s}, {32*s}, v9")
    for s in range(4):
        a.e(f"v_add_u32 v{13+s}, 81920, v{9+s}")
    a.e("v_bfe_u32 v20, v1, 2, 2")
    a.e("v_lshl_add_u32 v20, v21, 3, v20")
    a.e("v_mul_u32_u24 v20, 192, v20")
    a.e("v_bfe_u32 v22, v1, 4, 1")
    a.e("v_lshl_add_u32 v20, v22, 5, v20")
    a.e("v_and_b32 v22, 3, v1")
    a.e("v_lshl_add_u32 v20, v22, 3, v20")
    a.e("v_add_u32 v17, 16384, v20")
    a.e("v_add_u32 v18, 81920, v17")
    a.e("v_bfe_u32 v20, v1, 4, 1")
    a.e("v_lshlrev_b32 v20, 10, v20")
    a.e("v_lshl_add_u32 v20, v21, 8, v20")
    a.e("v_and_b32 v22, 15, v1")
    a.e("v_lshl_add_u32 v19, v22, 4, v20")
    a.e("s_lshl_b32 s42, s32, 12")
    a.e("s_mul_i32 s43, s32, 3072")
    a.e("s_add_u32 s43, s43, 16384")
    a.e("s_waitcnt lgkmcnt(0)")
    srd(a, 8, 4, 5, 2048 * 1024)
    srd(a, 12, 6, 7, 512 * 2752)
    srd(a, 16, 24, 25, 512 * 2752)
    srd(a, 20, 26, 27, H_BYTES)

    def dma_stage(st):
        buf = (st % 4) * 40960
        a.e(f"s_mov_b32 s40, {st*128}")
        a.e(f"s_mov_b32 s41, {st*176128}")
        for t in range(4):
            a.e(f"s_add_u32 m0, s42, {buf + t*1024}")
            a.e("s_nop 0")
            a.vm_op(f"buffer_load_dwordx4 v{2+t}, s[8:11], s40 offen lds", ("st", st))
        for gu in range(2):
            for i in range(3):
                a.e(f"s_add_u32 m0, s43, {buf + gu*12288 + i*1024}")
                a.e("s_nop 0")
                a.vm_op(f"buffer_load_dwordx4 v{6+i}, s[{12+4*gu}:{15+4*gu}], s41 offen lds", ("st", st))

    for st in range(4): dma_stage(st)

    def WF(j): return 20 + 4 * j
    def XF(n): return 44 + 4 * (n & 1)
    def ACC(j): return 64 + 16 * j
    def read_x(n):
        st, s = n >> 2, n & 3
        b = st % 4
        reg = (9 if b < 2 else 13) + s
        off = (b & 1) * 40960
        a.lds_op(f"ds_read_b128 v[{XF(n)}:{XF(n)+3}], v{reg} offset:{off}", ("x", n))
    def read_w(n, j):
        st, s = n >> 2, n & 3
        b = st % 4
        u, gu = j >> 1, j & 1
        reg = 17 if b < 2 else 18
        for h in range(2):
            off = (b & 1) * 40960 + gu * 12288 + s * 3072 + h * 768 + u * 64
            a.lds_op(f"ds_read_b64_tr_b16 v[{WF(j)+2*h}:{WF(j)+2*h+1}], v{reg} offset:{off}", ("w", n, j))

    a.wait(vm_tags=[("st", 0)])
    a.e("s_barrier")
    read_x(0)
    for j in range(6): read_w(0, j)
    NS = 32
    for n in range(NS):
        st, s = n >> 2, n & 3
        nxt = n + 1 < NS
        newstage = nxt and s == 3
        for j in range(6):
            a.wait(lds_tags=[("w", n, j), ("x", n)])
            cin = "0" if n == 0 else f"v[{ACC(j)}:{ACC(j)+15}]"
            a.e(f"v_mfma_f32_32x32x16_bf16 v[{ACC(j)}:{ACC(j)+15}], v[{WF(j)}:{WF(j)+3}], v[{XF(n)}:{XF(n)+3}], {cin}")
            if not nxt: continue
            if not newstage:
                if j == 0: read_x(n + 1)
                read_w(n + 1, j)
            else:
                if j == 0: continue
                if j == 1:
                    a.wait_all_lds()
                    a.wait(vm_tags=[("st", st + 1)])
                    a.e("s_barrier")
                    read_x(n + 1)
                    read_w(n + 1, 0)
                    read_w(n + 1, 1)
                    if st + 4 < 8: dma_stage(st + 4)
                else:
                    read_w(n + 1, j)
    a.e("s_nop 15")
    a.e(f"v_mov_b32 v60, 0x{f2u(C1):08x}")
    a.e("s_lshl_b32 s33, s28, 3")
    a.e("s_lshl_b32 s34, s32, 1")
    a.e("s_add_u32 s33, s33, s34")
    a.e("s_lshl_b32 s34, s30, 7")
    a.e("s_add_u32 s33, s33, s34")
    a.e("s_lshl_b32 s33, s33, 10")
    T = 160
    for u in range(3):
        if u == 2:
            a.e("s_cmp_lt_u32 s31, 3")
            a.e("s_cbranch_scc1 K1_END")
        G, U = ACC(2 * u), ACC(2 * u + 1)
        for half in range(2):
            rs = range(8 * half, 8 * half + 8)
            for r in rs: a.e(f"v_mul_f32 v{T+r}, v{G+r}, v{G+r}")
            for r in rs: a.e(f"v_fmamk_f32 v{T+r}, v{T+r}, 0x{f2u(C2):08x}, v60")
            for r in rs: a.e(f"v_mul_f32 v{T+r}, v{T+r}, v{G+r}")
            for r in rs: a.e(f"v_exp_f32 v{T+r}, v{T+r}")
            for r in rs: a.e(f"v_mul_f32 v{T+16+r}, v{G+r}, v{U+r}")
            for r in rs: a.e(f"v_add_f32 v{T+r}, 1.0, v{T+r}")
            for r in rs: a.e(f"v_rcp_f32 v{T+r}, v{T+r}")
            a.e("s_nop 0")
            for r in rs: a.e(f"v_mul_f32 v{T+r}, v{T+r}, v{T+16+r}")
            O = 200 + 8 * u + 4 * half
            for i in range(4):
                r = 8 * half + 2 * i
                a.e(f"v_cvt_pk_bf16_f32 v{O+i}, v{T+r}, v{T+r+1}")
            a.e(f"buffer_store_dwordx4 v[{O}:{O+3}], v19, s[20:23], s33 offen offset:{512*half}")
        a.e("s_add_u32 s33, s33, 131072")
    a.label("K1_END")
    a.e("s_endpgm")
    return a.text()

def kernel2():
    a = Asm()
    a.label("k2_kernel")
    a.e("s_cmp_ge_u32 s2, 256")
    a.e("s_cbranch_scc1 K2_END")
    a.e("s_load_dwordx4 s[4:7], s[0:1], 24")
    a.e("s_load_dwordx2 s[26:27], s[0:1], 48")
    a.e("s_and_b32 s33, s2, 7")
    a.e("s_lshr_b32 s34, s2, 3")
    a.e("s_lshl_b32 s28, s33, 2")
    a.e("s_lshr_b32 s35, s34, 3")
    a.e("s_add_u32 s28, s28, s35")
    a.e("s_and_b32 s29, s34, 7")
    a.e("v_and_b32 v1, 63, v0")
    a.e("v_lshrrev_b32 v2, 6, v0")
    a.e("s_nop 0")
    a.e("v_readfirstlane_b32 s32, v2")
    a.e("s_lshl_b32 s33, s28, 12")
    a.e("v_lshlrev_b32 v2, 4, v1")
    a.e("v_add_u32 v2, s33, v2")
    a.e("v_lshrrev_b32 v5, 5, v1")
    a.e("v_lshlrev_b32 v5, 14, v5")
    a.e("v_bfe_u32 v6, v1, 4, 1")
    a.e("v_lshl_add_u32 v5, v6, 12, v5")
    a.e("v_and_b32 v6, 15, v1")
    a.e("v_lshl_add_u32 v5, v6, 3, v5")
    a.e("s_lshl_b32 s33, s29, 7")
    a.e("v_add_u32 v3, s33, v5")
    a.e("v_add_u32 v4, 8192, v3")
    a.e("s_mul_i32 s36, s32, 11")
    a.e("s_lshl_b32 s40, s36, 17")
    a.e("s_lshl_b32 s41, s36, 15")
    a.e("s_mov_b32 s44, 0x05040100")
    a.e("s_mov_b32 s45, 0x07060302")
    a.e("s_waitcnt lgkmcnt(0)")
    srd(a, 8, 4, 5, 1376 * 1024)
    srd(a, 12, 6, 7, 2048 * 1024)
    srd(a, 20, 26, 27, H_BYTES)
    NB = 5
    def HB(i, mi): return 16 + (i % NB) * 32 + 4 * mi
    def WB(i, e): return 16 + (i % NB) * 32 + 16 + 2 * e
    AF = 16 + NB * 32
    def ACC(j, mi): return 192 + 16 * mi + 4 * j
    def loads(i):
        for e in range(8):
            vo = 3 if e < 4 else 4
            a.vm_op(f"buffer_load_dwordx2 v[{WB(i,e)}:{WB(i,e)+1}], v{vo}, s[8:11], s41 offen offset:{(e&3)*1024}", ("ld", i))
        for mi in range(4):
            a.vm_op(f"buffer_load_dwordx4 v[{HB(i,mi)}:{HB(i,mi)+3}], v2, s[20:23], s40 offen offset:{mi*1024}", ("ld", i))
        a.e("s_add_u32 s40, s40, 131072")
        a.e("s_add_u32 s41, s41, 32768")
    for i in range(NB): loads(i)
    for i in range(11):
        a.wait(vm_tags=[("ld", i)])
        for j in range(4):
            for q in range(4):
                sel = "s44" if (j & 1) == 0 else "s45"
                a.e(f"v_perm_b32 v{AF+4*j+q}, v{WB(i,2*q+1)+(j>>1)}, v{WB(i,2*q)+(j>>1)}, {sel}")
        a.e("s_nop 1")
        for j in range(4):
            for mi in range(4):
                cin = "0" if i == 0 else f"v[{ACC(j,mi)}:{ACC(j,mi)+3}]"
                a.e(f"v_mfma_f32_16x16x32_bf16 v[{ACC(j,mi)}:{ACC(j,mi)+3}], v[{AF+4*j}:{AF+4*j+3}], v[{HB(i,mi)}:{HB(i,mi)+3}], {cin}")
        if i + NB < 11: loads(i + NB)
    a.e("s_nop 7")
    a.e("s_lshl_b32 s33, s32, 12")
    a.e("v_lshlrev_b32 v5, 4, v1")
    a.e("v_add_u32 v6, s33, v5")
    a.e("s_lshl_b32 s33, s32, 14")
    a.e("v_add_u32 v7, s33, v5")
    for t in range(4):
        for j in range(4):
            a.e(f"ds_write_b128 v6, v[{ACC(j,t)}:{ACC(j,t)+3}] offset:{t*16384 + j*1024}")
    a.e("s_waitcnt lgkmcnt(0)")
    a.e("s_barrier")
    for src in range(4):
        for j in range(4):
            a.e(f"ds_read_b128 v[{16+16*src+4*j}:{16+16*src+4*j+3}], v7 offset:{src*4096 + j*1024}")
    a.e("s_lshl_b32 s33, s28, 6")
    a.e("s_lshl_b32 s34, s32, 4")
    a.e("s_add_u32 s33, s33, s34")
    a.e("s_lshl_b32 s33, s33, 10")
    a.e("s_lshl_b32 s34, s29, 7")
    a.e("s_add_u32 s33, s33, s34")
    a.e("v_and_b32 v5, 15, v1")
    a.e("v_lshlrev_b32 v5, 10, v5")
    a.e("v_lshrrev_b32 v6, 4, v1")
    a.e("v_lshl_add_u32 v5, v6, 5, v5")
    a.e("s_waitcnt lgkmcnt(0)")
    for k in range(16):
        a.e(f"v_add_f32 v{16+k}, v{16+k}, v{32+k}")
        a.e(f"v_add_f32 v{48+k}, v{48+k}, v{64+k}")
    for k in range(16):
        a.e(f"v_add_f32 v{16+k}, v{16+k}, v{48+k}")
    for r in range(4):
        a.e(f"v_cvt_pk_bf16_f32 v{80+2*r}, v{16+r}, v{20+r}")
        a.e(f"v_cvt_pk_bf16_f32 v{80+2*r+1}, v{24+r}, v{28+r}")
    a.e("buffer_store_dwordx4 v[80:83], v5, s[12:15], s33 offen")
    a.e("buffer_store_dwordx4 v[84:87], v5, s[12:15], s33 offen offset:16")
    a.label("K2_END")
    a.e("s_endpgm")
    return a.text()

def desc(name, vgpr, sgpr=64):
    return f""".p2align 6
.amdhsa_kernel {name}
  .amdhsa_next_free_vgpr {vgpr}
  .amdhsa_next_free_sgpr {sgpr}
  .amdhsa_accum_offset {min(256, (vgpr+3)//4*4)}
  .amdhsa_group_segment_fixed_size 0
  .amdhsa_kernarg_size 56
  .amdhsa_user_sgpr_count 2
  .amdhsa_user_sgpr_kernarg_segment_ptr 1
  .amdhsa_system_sgpr_workgroup_id_x 1
.end_amdhsa_kernel
"""

HDR = open("standalone__glu_gated_geglu__prompt.s.ref").read().split("; Override")[0]
out = HDR
out += "; @launch kernel=k1_kernel grid=(256,1,1) block=(256,1,1) lds=163840\n"
out += "; @launch kernel=k2_kernel grid=(256,1,1) block=(256,1,1) lds=65536\n"
out += '.amdgcn_target "amdgcn-amd-amdhsa--gfx950"\n.text\n'
for name, body in (("k1_kernel", kernel1()), ("k2_kernel", kernel2())):
    out += f".globl {name}\n.p2align 8\n.type {name},@function\n{body}\n"
out += '.section .rodata,"a"\n' + desc("k1_kernel", 256) + desc("k2_kernel", 256)
open(sys.argv[1], "w").write(out)
```

```python
import sys, struct
OPT = set(sys.argv[2:])
DIAG = 'diag' in OPT
KN = "standalone__glu_gated_geglu__prompt_kernel"
def f2u(x): return struct.unpack("<I", struct.pack("<f", x))[0]

class Asm:
    def __init__(self):
        self.lines = []; self.lds = []; self.vm = []; self.nst = {}
    def e(self, s): self.lines.append("    " + s)
    def label(self, s): self.lines.append(s + ":")
    def c(self, s): self.lines.append("    ; " + s)
    def reset(self): self.lds = []; self.vm = []
    def lds_op(self, s, tag=None): self.e(s); self.lds.append(tag)
    def vm_op(self, s, tag=None): self.e(s); self.vm.append(tag)
    def _need(self, q, tags):
        last = -1
        for i, t in enumerate(q):
            if t in tags: last = i
        return last
    def wait(self, lds_tags=(), vm_tags=()):
        parts = []
        if vm_tags:
            last = self._need(self.vm, vm_tags)
            if last >= 0:
                n = len(self.vm) - 1 - last
                assert n <= 63, n
                parts.append(f"vmcnt({n})"); self.vm = self.vm[last + 1:]
        if lds_tags:
            last = self._need(self.lds, lds_tags)
            if last >= 0:
                n = min(len(self.lds) - 1 - last, 15)
                parts.append(f"lgkmcnt({n})")
                self.lds = self.lds[len(self.lds) - n:] if n else []
        if parts: self.e("s_waitcnt " + " ".join(parts))
    def wait_all_lds(self): self.e("s_waitcnt lgkmcnt(0)"); self.lds = []
    def wait_all_vm(self): self.e("s_waitcnt vmcnt(0)"); self.vm = []
    def text(self): return "\n".join(self.lines)
    def stamp(self, path):
        if not DIAG: return
        k = self.nst[path] = self.nst.get(path, 0) + 1
        assert k < 16
        self.e(f"s_memrealtime s[{68+2*k}:{69+2*k}]")
        self.e("s_waitcnt lgkmcnt(0)"); self.lds = []
    def dump_stamps(self, path):
        if not DIAG: return
        n = self.nst.get(path, 0) + 1
        self.e("s_waitcnt vmcnt(0)")
        self.e("s_memrealtime s[66:67]")
        self.e("s_waitcnt lgkmcnt(0)")
        self.e("s_mov_b32 s22, 0x10000000")
        self.e("s_lshl_b32 s64, s2, 4"); self.e("s_add_u32 s64, s64, s54"); self.e("s_lshl_b32 s64, s64, 7")
        self.e("s_add_u32 s64, s64, 0x4000000")
        self.e("v_mov_b32 v1, 0")
        for k in range(n):
            self.e(f"v_mov_b32 v2, s{68+2*k}")
            self.e(f"buffer_store_dword v2, v1, s[20:23], s64 offen offset:{4*k}")
        self.e("v_mov_b32 v3, s66")
        self.e(f"buffer_store_dword v3, v1, s[20:23], s64 offen offset:{4*n}")

H_BYTES = 43 * 128 * 1024
C1 = -2.0 * 1.4426950408889634 * 0.7978845608028654
C2 = C1 * 0.044715
BUF = 40960
def srd(a, d, lo, nbytes):
    a.e(f"s_mov_b32 s{d}, s{lo}")
    a.e(f"s_and_b32 s{d+1}, s{lo+1}, 0xffff")
    a.e(f"s_mov_b32 s{d+2}, {nbytes}")
    a.e(f"s_mov_b32 s{d+3}, 0x20000")

a = Asm()
a.label(KN)
a.e("s_cmp_ge_u32 s2, 256")
a.e("s_cbranch_scc1 L_END")
if DIAG: a.e("s_memrealtime s[68:69]")
a.e("s_load_dwordx8 s[36:43], s[0:1], 0")
a.e("s_load_dwordx4 s[44:47], s[0:1], 32")
a.e("s_load_dwordx2 s[48:49], s[0:1], 48")
a.e("v_and_b32 v1, 63, v0")
a.e("v_lshrrev_b32 v2, 6, v0")
a.e("s_and_b32 s58, s2, 7")
a.e("v_readfirstlane_b32 s54, v2")
a.e("s_lshr_b32 s59, s2, 3")
a.e("s_and_b32 s50, s58, 1")
a.e("s_lshl_b32 s50, s50, 3")
a.e("s_and_b32 s57, s59, 7")
a.e("s_add_u32 s50, s50, s57")
a.e("s_lshr_b32 s51, s58, 1")
a.e("s_lshl_b32 s51, s51, 2")
a.e("s_lshr_b32 s61, s59, 3")
a.e("s_add_u32 s51, s51, s61")
a.e("s_mul_i32 s52, s51, 43")
a.e("s_add_u32 s53, s52, 43")
a.e("s_lshr_b32 s52, s52, 4")
a.e("s_lshr_b32 s53, s53, 4")
a.e("s_sub_u32 s53, s53, s52")
a.e("s_lshl_b32 s56, s58, 2")
a.e("s_add_u32 s56, s56, s61")
a.e("s_and_b32 s55, s54, 3")
a.e("s_cmp_lt_u32 s54, 8")
a.e("s_cbranch_scc1 L_COMPUTE")

a.c("LOADER")
a.e("s_lshl_b32 s60, s61, 1")
a.e("s_add_u32 s60, s60, s57")
if 'norot' in OPT: a.e("s_mov_b32 s60, 0")
a.e("v_lshrrev_b32 v20, 3, v1")
a.e("v_lshrrev_b32 v21, 4, v1")
a.e("v_and_b32 v22, 7, v1")
a.e("v_xor_b32 v24, v22, v21")
a.e("v_xor_b32 v23, 4, v24")
a.e("s_lshl_b32 s58, s50, 7")
a.e("s_lshl_b32 s59, s55, 5")
a.e("s_add_u32 s58, s58, s59")
a.e("s_lshl_b32 s58, s58, 10")
a.e("v_lshlrev_b32 v20, 10, v20")
a.e("v_add_u32 v25, s58, v20")
a.e("v_lshl_add_u32 v2, v24, 4, v25")
a.e("v_lshl_add_u32 v3, v23, 4, v25")
a.e("v_add_u32 v3, 8192, v3")
a.e("v_add_u32 v4, 16384, v2")
a.e("v_add_u32 v5, 16384, v3")
a.e("s_mul_i32 s58, s55, 44032")
a.e("s_lshl_b32 s59, s52, 6")
a.e("s_add_u32 s58, s58, s59")
a.e("s_movk_i32 s59, 2752")
for i in range(3):
    a.e(f"v_add_u32 v26, {64*i}, v1")
    a.e("v_mul_u32_u24 v27, 171, v26")
    a.e("v_lshrrev_b32 v27, 11, v27")
    a.e("v_mul_u32_u24 v28, 12, v27")
    a.e("v_sub_u32 v28, v26, v28")
    a.e("v_lshrrev_b32 v29, 2, v27")
    a.e("v_and_b32 v29, 2, v29")
    a.e("v_xor_b32 v28, v28, v29")
    a.e("v_mul_u32_u24 v27, s59, v27")
    a.e("v_lshl_add_u32 v27, v28, 4, v27")
    a.e(f"v_add_u32 v{6+i}, s58, v27")
a.e("s_lshl_b32 s62, s55, 12")
a.e("s_mul_i32 s63, s55, 3072")
a.e("s_add_u32 s63, s63, 16384")
a.e("s_waitcnt lgkmcnt(0)")
srd(a, 8, 36, 2048 * 1024)
srd(a, 12, 38, 512 * 2752)
srd(a, 16, 40, 512 * 2752)

def issue(st):
    buf = (st % 4) * BUF
    a.e(f"s_add_u32 s59, s60, {st}")
    a.e("s_and_b32 s59, s59, 7")
    a.e("s_lshl_b32 s58, s59, 7")
    a.e("s_mul_i32 s59, s59, 176128")
    for t in range(4):
        a.e(f"s_add_u32 m0, s62, {buf + t*1024}")
        a.e("s_nop 0")
        a.vm_op(f"buffer_load_dwordx4 v{2+t}, s[8:11], s58 offen lds", ("st", st))
    for gu in range(2):
        for i in range(3):
            a.e(f"s_add_u32 m0, s63, {buf + gu*12288 + i*1024}")
            a.e("s_nop 0")
            a.vm_op(f"buffer_load_dwordx4 v{6+i}, s[{12+4*gu}:{15+4*gu}], s59 offen lds", ("st", st))
def issueW(qp):
    a.e(f"s_add_u32 s58, s56, {qp}")
    a.e("s_and_b32 s58, s58, 3")
    a.e("s_mul_i32 s58, s58, 327680")
    a.e("s_add_u32 s58, s58, s65")
    for i in range(10):
        a.e(f"s_add_u32 m0, s64, {qp*BUF + i*1024}")
        if i: a.e("s_add_u32 s58, s58, 8192")
        else: a.e("s_nop 0")
        a.vm_op(f"buffer_load_dwordx4 v{9 + (i & 1)}, s[24:27], s58 offen lds", ("st", 8 + qp))

a.stamp("L")
issue(0)
if 'codepf' in OPT:
    a.e("s_getpc_b64 s[58:59]")
    a.e("s_and_b32 s58, s58, 0xffffff00")
    a.e("s_lshl_b32 s61, s55, 13")
    a.e("v_lshlrev_b32 v26, 7, v1")
    a.e("v_add_u32 v26, s61, v26")
    a.e("v_min_u32 v26, CODE_END_OFF, v26")
    a.vm_op("global_load_dword v27, v26, s[58:59]", ("st", 1))
issue(1)
a.e("v_and_b32 v21, 1, v21")
a.e("v_lshlrev_b32 v21, 1, v21")
a.e("v_xor_b32 v22, v22, v21")
a.e("s_lshl_b32 s58, s57, 7")
a.e("v_add_u32 v20, s58, v20")
a.e("v_lshl_add_u32 v9, v22, 4, v20")
a.e("v_xor_b32 v22, 4, v22")
a.e("v_lshl_add_u32 v10, v22, 4, v20")
srd(a, 24, 42, 1376 * 1024)
srd(a, 20, 48, H_BYTES)
srd(a, 32, 46, 256)
a.e("s_mul_i32 s64, s55, 10240")
a.e("s_mul_i32 s65, s55, 81920")
a.stamp("L")
for s in range(0, 8):
    a.wait(vm_tags=[("st", s)]); a.e("s_barrier")
    if s in (0, 3): a.stamp("L")
    if s + 2 < 8: issue(s + 2)
    else: issueW(s - 6)
a.stamp("L")
a.e("s_barrier")
issueW(2)
issueW(3)
XR = 32
a.e("s_add_u32 s58, s55, 40")
a.e("s_lshl_b32 s58, s58, 15")
for i in range(4):
    a.vm_op(f"buffer_load_dwordx4 v[{XR+4*i}:{XR+4*i+3}], v{9 + (i & 1)}, s[24:27], s58 offen", "xr")
    if i < 3: a.e("s_add_u32 s58, s58, 8192")
a.e(f"s_mul_i32 s58, s55, {BUF}")
a.e("s_lshl_b32 s59, s57, 12")
if 'norot2' in OPT: a.e("s_mov_b32 s59, 0")
a.e("s_add_u32 s58, s58, s59")
a.e("v_lshlrev_b32 v14, 4, v1")
a.e("v_add_u32 v14, s58, v14")
a.e("v_mov_b32 v17, 0")
a.e("s_lshr_b32 s59, s56, 1")
a.e("s_lshl_b32 s59, s59, 4")
a.wait_all_vm()
a.stamp("L")
a.e("s_barrier")
a.stamp("L")
a.e("s_cmp_lg_u32 s55, 0")
a.e("s_cbranch_scc1 L_POLLDONE")
a.e("s_mov_b32 s3, 0")
a.label("L_POLL")
a.e("s_add_u32 s3, s3, 1")
a.e("s_cmp_gt_u32 s3, 0x40000")
a.e("s_cbranch_scc1 L_POLLDONE")
a.e("buffer_load_dwordx4 v[20:23], v17, s[32:35], s59 offen sc1")
a.e("s_waitcnt vmcnt(0)")
a.e("v_and_b32 v20, v20, v21")
a.e("v_and_b32 v22, v22, v23")
a.e("v_and_b32 v20, v20, v22")
a.e("v_cmp_ne_u32 vcc, 0x01010101, v20")
a.e("s_cbranch_vccz L_POLLDONE")
if 'nosleep' not in OPT: a.e("s_sleep 1")
a.e("s_branch L_POLL")
a.label("L_POLLDONE")
a.e("s_barrier")
a.stamp("L")
for q in range(4):
    a.e(f"ds_write_b128 v14, v[{XR+4*q}:{XR+4*q+3}] offset:{q*1024}")
a.e("s_waitcnt lgkmcnt(0)")
a.e("s_barrier")
a.dump_stamps("L")
a.e("s_endpgm")

a.reset()
a.e(".p2align 6")
a.label("L_COMPUTE")
a.e("s_lshr_b32 s63, s54, 2")
a.e("v_and_b32 v20, 15, v1")
a.e("v_lshrrev_b32 v21, 4, v1")
a.e("v_bfe_u32 v22, v20, 1, 3")
a.e("v_xor_b32 v22, v22, v21")
a.e("v_lshlrev_b32 v22, 4, v22")
a.e("v_lshl_add_u32 v22, v20, 7, v22")
a.e("s_lshl_b32 s58, s55, 12")
a.e("v_add_u32 v2, s58, v22")
a.e("v_xor_b32 v3, 64, v2")
a.e(f"v_add_u32 v4, {2*BUF}, v2")
a.e(f"v_add_u32 v5, {2*BUF}, v3")
a.e("v_bfe_u32 v22, v1, 2, 2")
a.e("v_lshl_add_u32 v22, v21, 3, v22")
a.e("v_mul_u32_u24 v22, 192, v22")
a.e("v_and_b32 v23, 3, v1")
a.e("v_lshl_add_u32 v22, v23, 3, v22")
a.e("v_add_u32 v22, 16384, v22")
a.e("v_and_b32 v23, 1, v21")
a.e("s_mul_i32 s62, s63, s53")
for ft in range(3):
    a.e(f"s_add_u32 s58, s62, {ft}")
    a.e("v_xor_b32 v24, s58, v23")
    a.e(f"v_lshl_add_u32 v{6+ft}, v24, 5, v22")
    a.e(f"v_add_u32 v{9+ft}, {2*BUF}, v{6+ft}")
a.e("v_lshlrev_b32 v24, 10, v23")
a.e("v_lshrrev_b32 v25, 1, v21")
a.e("v_lshl_add_u32 v24, v25, 8, v24")
a.e("v_lshl_add_u32 v24, v20, 4, v24")
a.e("s_lshl_b32 s58, s50, 3")
a.e("s_lshl_b32 s59, s55, 1")
a.e("s_add_u32 s58, s58, s59")
a.e("s_lshl_b32 s58, s58, 10")
a.e("v_add_u32 v12, s58, v24")
a.e(f"v_mov_b32 v13, 0x{f2u(C1):08x}")
a.e("s_lshl_b32 s60, s52, 1")
a.e("s_add_u32 s60, s60, s62")
a.e("s_lshl_b32 s61, s50, 4")
a.e("s_add_u32 s61, s61, s51")
a.e("s_waitcnt lgkmcnt(0)")
srd(a, 20, 48, H_BYTES)
srd(a, 28, 44, 2048 * 1024)
srd(a, 32, 46, 256)
if 'prio' in OPT: a.e("s_setprio 2")

def WF(j): return 16 + 4 * j
def XF(n, mi): return 40 + 8 * (n & 1) + 4 * mi
def ACC(j, mi): return 56 + 8 * j + 4 * mi
def read_x(n):
    st, s2 = n >> 1, n & 1
    b = st % 4
    reg = (2 if b < 2 else 4) + s2
    for mi in range(2):
        a.lds_op(f"ds_read_b128 v[{XF(n,mi)}:{XF(n,mi)+3}], v{reg} offset:{(b & 1) * BUF + mi * 2048}", ("x", n))
def read_w(n, j):
    st, s2 = n >> 1, n & 1
    b = st % 4
    ft, gu = j >> 1, j & 1
    reg = (6 if b < 2 else 9) + ft
    for h in range(2):
        off = (b & 1) * BUF + gu * 12288 + s2 * 6144 + h * 768
        a.lds_op(f"ds_read_b64_tr_b16 v[{WF(j)+2*h}:{WF(j)+2*h+1}], v{reg} offset:{off}", ("w", n, j))

a.e("s_barrier")
a.stamp("C")
read_x(0)
for j in range(6): read_w(0, j)
NS = 16
for n in range(NS):
    st, s2 = n >> 1, n & 1
    nxt = n + 1 < NS
    for j in range(6):
        a.wait(lds_tags=[("w", n, j), ("x", n)])
        for mi in range(2):
            cin = "0" if n == 0 else f"v[{ACC(j,mi)}:{ACC(j,mi)+3}]"
            a.e(f"v_mfma_f32_16x16x32_bf16 v[{ACC(j,mi)}:{ACC(j,mi)+3}], v[{WF(j)}:{WF(j)+3}], v[{XF(n,mi)}:{XF(n,mi)+3}], {cin}")
        if s2 == 0:
            if j == 0: read_x(n + 1)
            read_w(n + 1, j)
        else:
            if j == 0: continue
            if j == 1:
                a.wait_all_lds()
                a.e("s_barrier")
                if st in (1, 3, 5): a.stamp("C")
                if nxt:
                    read_x(n + 1); read_w(n + 1, 0); read_w(n + 1, 1)
            elif nxt:
                read_w(n + 1, j)
a.e("s_nop 7")
a.stamp("C")
T = 104
for ft in range(3):
    if ft == 2:
        a.e("s_cmp_lt_u32 s53, 3")
        a.e("s_cbranch_scc1 L_EPI_DONE")
    G, U = ACC(2 * ft, 0), ACC(2 * ft + 1, 0)
    rs = range(8)
    for r in rs: a.e(f"v_mul_f32 v{T+r}, v{G+r}, v{G+r}")
    for r in rs: a.e(f"v_fmamk_f32 v{T+r}, v{T+r}, 0x{f2u(C2):08x}, v13")
    for r in rs: a.e(f"v_mul_f32 v{T+r}, v{T+r}, v{G+r}")
    for r in rs: a.e(f"v_exp_f32 v{T+r}, v{T+r}")
    for r in rs: a.e(f"v_mul_f32 v{T+8+r}, v{G+r}, v{U+r}")
    for r in rs: a.e(f"v_add_f32 v{T+r}, 1.0, v{T+r}")
    for r in rs: a.e(f"v_rcp_f32 v{T+r}, v{T+r}")
    a.e("s_lshr_b32 s58, s60, 1")
    for r in rs: a.e(f"v_mul_f32 v{T+r}, v{T+r}, v{T+8+r}")
    O = 136 + 4 * ft
    for i in range(4):
        a.e(f"v_cvt_pk_bf16_f32 v{O+i}, v{T+2*i}, v{T+2*i+1}")
    a.e("s_lshl_b32 s58, s58, 17")
    a.e("s_and_b32 s59, s60, 1")
    a.e("s_lshl_b32 s59, s59, 9")
    a.e(f"v_permlane16_swap_b32 v{O}, v{O+2}")
    a.e(f"v_permlane16_swap_b32 v{O+1}, v{O+3}")
    a.e("s_add_u32 s58, s58, s59")
    a.e("s_add_u32 s60, s60, 1")
    a.e(f"buffer_store_dwordx4 v[{O}:{O+3}], v12, s[20:23], s58 offen sc1")
a.label("L_EPI_DONE")
a.stamp("C")
a.e("v_lshrrev_b32 v21, 4, v1")
a.e("v_and_b32 v23, 1, v21")
a.e("v_bfe_u32 v22, v1, 2, 2")
a.e("v_lshl_add_u32 v22, v21, 3, v22")
a.e("v_lshlrev_b32 v22, 7, v22")
a.e("v_and_b32 v24, 1, v1")
a.e("v_lshl_add_u32 v22, v24, 3, v22")
a.e("v_bfe_u32 v24, v1, 1, 1")
a.e("v_lshl_add_u32 v22, v24, 4, v22")
a.e(f"s_mul_i32 s58, s55, {BUF}")
a.e("v_add_u32 v22, s58, v22")
a.e("v_bfe_u32 v24, v1, 3, 1")
a.e("v_lshl_add_u32 v24, v23, 1, v24")
a.e("v_lshlrev_b32 v24, 1, v24")
for j in range(4):
    a.e(f"v_xor_b32 v25, {2*j}, v24")
    a.e(f"v_lshl_add_u32 v{2+j}, v25, 4, v22")
a.e("v_lshlrev_b32 v14, 4, v1")
a.e("s_lshl_b32 s59, s63, 13")
a.e("s_add_u32 s58, s58, s59")
a.e("v_add_u32 v15, s58, v14")
a.e("s_lshl_b32 s58, s56, 12")
a.e("s_lshl_b32 s59, s63, 11")
a.e("s_add_u32 s58, s58, s59")
a.e("v_add_u32 v6, s58, v14")
a.e("s_add_u32 s64, s55, s56")
a.e("s_and_b32 s64, s64, 3")
a.e("s_mul_i32 s64, s64, 10")
a.e("s_mov_b32 s65, s57")
if 'norot2' in OPT: a.e("s_mov_b32 s65, 0")
a.e("s_mov_b32 s62, s65")
a.e("s_lshl_b32 s60, s65, 12")
a.e("s_waitcnt vmcnt(0)")
a.stamp("C")
a.e("s_barrier")
a.e("s_cmp_lg_u32 s54, 0")
a.e("s_cbranch_scc1 L_NOFLAG")
a.e("v_mov_b32 v24, 1")
a.e("v_mov_b32 v25, 0")
a.e("s_mov_b64 exec, 1")
a.e("buffer_store_byte v24, v25, s[32:35], s61 offen sc1")
a.e("s_mov_b64 exec, -1")
a.label("L_NOFLAG")
def HB(i, mi): return 80 + i * 8 + 4 * mi
def AFR(i, j): return 16 + (i & 1) * 16 + 4 * j
def ACC2(j, mi): return 48 + 16 * mi + 4 * j
def h_loads(i):
    if i < 10:
        a.e("s_add_u32 s58, s64, s65")
        a.e("s_lshl_b32 s58, s58, 17")
        a.e("s_add_u32 s65, s65, 1")
        a.e("s_cmp_eq_u32 s65, 10")
        a.e("s_cselect_b32 s65, 0, s65")
    else:
        a.e("s_add_u32 s58, s55, 40")
        a.e("s_lshl_b32 s58, s58, 17")
    for mi in range(2):
        a.vm_op(f"buffer_load_dwordx4 v[{HB(i,mi)}:{HB(i,mi)+3}], v6, s[20:23], s58 offen offset:{mi*1024} sc1", ("h", i))
def a_addr(i):
    if i < 10:
        a.e("s_lshl_b32 s59, s62, 12")
        a.e("s_add_u32 s62, s62, 1")
        a.e("s_cmp_eq_u32 s62, 10")
        a.e("s_cselect_b32 s62, 0, s62")
        sreg = "s59"
    else: sreg = "s60"
    for j in range(4): a.e(f"v_add_u32 v{8+j}, {sreg}, v{2+j}")
def a_read(i, j):
    for hh in range(2):
        a.lds_op(f"ds_read_b64_tr_b16 v[{AFR(i,j)+2*hh}:{AFR(i,j)+2*hh+1}], v{8+j} offset:{hh*512}", ("a", i, j))
a.vm = []
a_addr(0)
for j in range(4): a_read(0, j)
a.wait_all_lds()
a.e("s_barrier")
a.stamp("C")
for i in range(11): h_loads(i)
for i in range(11):
    if i + 1 < 11: a_addr(i + 1)
    if i == 9: a.e("s_barrier")
    a.wait(vm_tags=[("h", i)])
    if i == 0: a.stamp("C")
    for j in range(4):
        a.wait(lds_tags=[("a", i, j)])
        for mi in range(2):
            cin = "0" if i == 0 else f"v[{ACC2(j,mi)}:{ACC2(j,mi)+3}]"
            a.e(f"v_mfma_f32_16x16x32_bf16 v[{ACC2(j,mi)}:{ACC2(j,mi)+3}], v[{AFR(i,j)}:{AFR(i,j)+3}], v[{HB(i,mi)}:{HB(i,mi)+3}], {cin}")
            if mi == 0 and i + 1 < 11: a_read(i + 1, j)
a.stamp("C")
a.e("s_barrier")
a.e("s_nop 7")
for mi in range(2):
    for j in range(4):
        a.e(f"ds_write_b128 v15, v[{ACC2(j,mi)}:{ACC2(j,mi)+3}] offset:{mi*4096 + j*1024}")
a.e("s_lshl_b32 s58, s55, 12")
a.e("s_lshl_b32 s59, s63, 11")
a.e("s_add_u32 s58, s58, s59")
a.e("v_add_u32 v8, s58, v14")
a.e(f"v_add_u32 v9, {2*BUF}, v8")
a.e("s_lshl_b32 s58, s56, 6")
a.e("s_lshl_b32 s59, s55, 4")
a.e("s_add_u32 s58, s58, s59")
a.e("s_lshl_b32 s58, s58, 10")
a.e("s_lshl_b32 s59, s57, 7")
a.e("s_add_u32 s58, s58, s59")
a.e("s_lshl_b32 s59, s63, 6")
a.e("s_add_u32 s58, s58, s59")
a.e("v_and_b32 v10, 15, v1")
a.e("v_lshlrev_b32 v10, 10, v10")
a.e("v_bfe_u32 v11, v1, 4, 1")
a.e("v_lshl_add_u32 v10, v11, 5, v10")
a.e("v_lshrrev_b32 v11, 5, v1")
a.e("v_lshl_add_u32 v10, v11, 4, v10")
a.wait_all_lds()
a.e("s_barrier")
for src in range(4):
    for jj in range(2):
        r = 80 + 8 * src + 4 * jj
        a.e(f"ds_read_b128 v[{r}:{r+3}], v{8 + (src >> 1)} offset:{(src & 1)*BUF + jj*1024}")
a.e("s_waitcnt lgkmcnt(4)")
for k in range(8): a.e(f"v_add_f32 v{80+k}, v{80+k}, v{88+k}")
a.e("s_waitcnt lgkmcnt(0)")
for k in range(8): a.e(f"v_add_f32 v{96+k}, v{96+k}, v{104+k}")
for k in range(8): a.e(f"v_add_f32 v{80+k}, v{80+k}, v{96+k}")
for k in range(4): a.e(f"v_cvt_pk_bf16_f32 v{16+k}, v{80+2*k}, v{80+2*k+1}")
a.e("s_nop 1")
a.e("v_permlane16_swap_b32 v16, v18")
a.e("v_permlane16_swap_b32 v17, v19")
a.e("s_nop 1")
a.e("buffer_store_dwordx4 v[16:19], v10, s[28:31], s58 offen")
a.dump_stamps("C")
a.label("L_END")
a.e("s_endpgm")
a.label("L_CODE_END")

HDR = open("standalone__glu_gated_geglu__prompt.s.ref").read().split("; Override")[0]
out = HDR + "; @launch grid=(256,1,1) block=(768,1,1) lds=163840\n"
out += f'.amdgcn_target "amdgcn-amd-amdhsa--gfx950"\n.text\n.globl {KN}\n.p2align 8\n.type {KN},@function\n'
out += f".set CODE_END_OFF, L_CODE_END - {KN} - 1024\n"
out += a.text() + f"""
.section .rodata,"a"
.p2align 6
.amdhsa_kernel {KN}
  .amdhsa_next_free_vgpr 168
  .amdhsa_next_free_sgpr 102
  .amdhsa_accum_offset 168
  .amdhsa_group_segment_fixed_size 0
  .amdhsa_kernarg_size 56
  .amdhsa_user_sgpr_count 2
  .amdhsa_user_sgpr_kernarg_segment_ptr 1
  .amdhsa_system_sgpr_workgroup_id_x 1
.end_amdhsa_kernel
"""
open(sys.argv[1], "w").write(out)
```

```python
import sys, struct
OPT = set(sys.argv[2:])
DIAG = 'diag' in OPT
KN = "standalone__glu_gated_geglu__prompt_kernel"
def f2u(x): return struct.unpack("<I", struct.pack("<f", x))[0]

class Asm:
    def __init__(self):
        self.lines = []; self.lds = []; self.vm = []; self.nst = {}
    def e(self, s): self.lines.append("    " + s)
    def label(self, s): self.lines.append(s + ":")
    def c(self, s): self.lines.append("    ; " + s)
    def reset(self): self.lds = []; self.vm = []
    def lds_op(self, s, tag=None): self.e(s); self.lds.append(tag)
    def vm_op(self, s, tag=None): self.e(s); self.vm.append(tag)
    def _need(self, q, tags):
        last = -1
        for i, t in enumerate(q):
            if t in tags: last = i
        return last
    def wait(self, lds_tags=(), vm_tags=()):
        parts = []
        if vm_tags:
            last = self._need(self.vm, vm_tags)
            if last >= 0:
                n = len(self.vm) - 1 - last
                assert n <= 63, n
                parts.append(f"vmcnt({n})"); self.vm = self.vm[last + 1:]
        if lds_tags:
            last = self._need(self.lds, lds_tags)
            if last >= 0:
                n = min(len(self.lds) - 1 - last, 15)
                parts.append(f"lgkmcnt({n})")
                self.lds = self.lds[len(self.lds) - n:] if n else []
        if parts: self.e("s_waitcnt " + " ".join(parts))
    def wait_all_lds(self): self.e("s_waitcnt lgkmcnt(0)"); self.lds = []
    def wait_all_vm(self): self.e("s_waitcnt vmcnt(0)"); self.vm = []
    def text(self): return "\n".join(self.lines)
    def stamp(self, path):
        if not DIAG: return
        k = self.nst[path] = self.nst.get(path, 0) + 1
        assert k < 16
        op = "s_memtime" if 'clk' in OPT else "s_memrealtime"
        self.e(f"{op} s[{68+2*k}:{69+2*k}]")
        self.e("s_waitcnt lgkmcnt(0)"); self.lds = []
    def dump_stamps(self, path):
        if not DIAG: return
        n = self.nst.get(path, 0) + 1
        if 'dbgout' in OPT:
            if path != "C": return
            self.e("s_waitcnt vmcnt(0)")
            self.e("s_memrealtime s[66:67]")
            self.e("s_waitcnt lgkmcnt(0)")
            self.e("s_cmp_lg_u32 s54, 0")
            self.e("s_cbranch_scc1 L_NODBG")
            self.e("s_mov_b64 exec, 1")
            self.e("v_mov_b32 v1, 0")
            slots = [4, 8, 12, 20, 24, 28, 36, 40, 44, 52, 56, 60]
            items = [("min", 68), ("min", 70), ("max", 70), ("min", 78), ("max", 78), ("max", 80), ("max", 82), ("min", 84), ("max", 84), ("max", 86), ("max", 88), ("max", 66)]
            for (kind, sr), off in zip(items, slots):
                if kind == "min": self.e(f"v_not_b32 v2, s{sr}")
                else: self.e(f"v_mov_b32 v2, s{sr}")
                self.e(f"buffer_atomic_umax v2, v1, s[32:35], 0 offen offset:{off}")
                self.e("s_nop 1")
            self.label("L_NODBG")
            return
        self.e("s_waitcnt vmcnt(0)")
        self.e("s_memrealtime s[66:67]")
        self.e("s_waitcnt lgkmcnt(0)")
        self.e("s_mov_b32 s22, 0x10000000")
        self.e("s_lshl_b32 s64, s2, 4"); self.e("s_add_u32 s64, s64, s54"); self.e("s_lshl_b32 s64, s64, 7")
        self.e("s_add_u32 s64, s64, 0x4000000")
        self.e("v_mov_b32 v1, 0")
        for k in range(n):
            self.e(f"v_mov_b32 v2, s{68+2*k}")
            self.e(f"buffer_store_dword v2, v1, s[20:23], s64 offen offset:{4*k}")
        self.e("v_mov_b32 v3, s66")
        self.e(f"buffer_store_dword v3, v1, s[20:23], s64 offen offset:{4*n}")

H_BYTES = 43 * 128 * 1024
C1 = -2.0 * 1.4426950408889634 * 0.7978845608028654
C2 = C1 * 0.044715
BUF = 40960
def srd(a, d, lo, nbytes):
    a.e(f"s_mov_b32 s{d}, s{lo}")
    a.e(f"s_and_b32 s{d+1}, s{lo+1}, 0xffff")
    a.e(f"s_mov_b32 s{d+2}, {nbytes}")
    a.e(f"s_mov_b32 s{d+3}, 0x20000")

a = Asm()
a.label(KN)
a.e("s_cmp_ge_u32 s2, 256")
a.e("s_cbranch_scc1 L_END")
if DIAG: a.e("s_memrealtime s[68:69]")
a.e("s_load_dwordx8 s[36:43], s[0:1], 0")
a.e("s_load_dwordx4 s[44:47], s[0:1], 32")
a.e("s_load_dwordx2 s[48:49], s[0:1], 48")
a.e("v_and_b32 v1, 63, v0")
a.e("v_lshrrev_b32 v2, 6, v0")
a.e("s_and_b32 s58, s2, 7")
a.e("v_readfirstlane_b32 s54, v2")
a.e("s_lshr_b32 s59, s2, 3")
a.e("s_and_b32 s50, s58, 1")
a.e("s_lshl_b32 s50, s50, 3")
a.e("s_and_b32 s57, s59, 7")
a.e("s_add_u32 s50, s50, s57")
a.e("s_lshr_b32 s51, s58, 1")
a.e("s_lshl_b32 s51, s51, 2")
a.e("s_lshr_b32 s61, s59, 3")
a.e("s_add_u32 s51, s51, s61")
a.e("s_mul_i32 s52, s51, 43")
a.e("s_add_u32 s53, s52, 43")
a.e("s_lshr_b32 s52, s52, 4")
a.e("s_lshr_b32 s53, s53, 4")
a.e("s_sub_u32 s53, s53, s52")
a.e("s_lshl_b32 s56, s58, 2")
a.e("s_add_u32 s56, s56, s61")
a.e("s_and_b32 s55, s54, 3")
a.e("s_cmp_lt_u32 s54, 8")
a.e("s_cbranch_scc1 L_COMPUTE")

a.c("LOADER")
a.e("s_lshl_b32 s60, s61, 1")
a.e("s_add_u32 s60, s60, s57")
if 'norot' in OPT: a.e("s_mov_b32 s60, 0")
a.e("v_lshrrev_b32 v20, 3, v1")
a.e("v_lshrrev_b32 v21, 4, v1")
a.e("v_and_b32 v22, 7, v1")
a.e("v_xor_b32 v24, v22, v21")
a.e("v_xor_b32 v23, 4, v24")
a.e("s_lshl_b32 s58, s50, 7")
a.e("s_lshl_b32 s59, s55, 5")
a.e("s_add_u32 s58, s58, s59")
a.e("s_lshl_b32 s58, s58, 10")
a.e("v_lshlrev_b32 v20, 10, v20")
a.e("v_add_u32 v25, s58, v20")
a.e("v_lshl_add_u32 v2, v24, 4, v25")
a.e("v_lshl_add_u32 v3, v23, 4, v25")
a.e("v_add_u32 v3, 8192, v3")
a.e("v_add_u32 v4, 16384, v2")
a.e("v_add_u32 v5, 16384, v3")
a.e("s_mul_i32 s58, s55, 44032")
a.e("s_lshl_b32 s59, s52, 6")
a.e("s_add_u32 s58, s58, s59")
a.e("s_movk_i32 s59, 2752")
for i in range(3):
    a.e(f"v_add_u32 v26, {64*i}, v1")
    a.e("v_mul_u32_u24 v27, 171, v26")
    a.e("v_lshrrev_b32 v27, 11, v27")
    a.e("v_mul_u32_u24 v28, 12, v27")
    a.e("v_sub_u32 v28, v26, v28")
    a.e("v_lshrrev_b32 v29, 2, v27")
    a.e("v_and_b32 v29, 2, v29")
    a.e("v_xor_b32 v28, v28, v29")
    a.e("v_mul_u32_u24 v27, s59, v27")
    a.e("v_lshl_add_u32 v27, v28, 4, v27")
    a.e(f"v_add_u32 v{6+i}, s58, v27")
a.e("s_lshl_b32 s62, s55, 12")
a.e("s_mul_i32 s63, s55, 3072")
a.e("s_add_u32 s63, s63, 16384")
a.e("s_waitcnt lgkmcnt(0)")
srd(a, 8, 36, 2048 * 1024)
srd(a, 12, 38, 512 * 2752)
srd(a, 16, 40, 512 * 2752)

def issue(st):
    if 'nodma' in OPT and st >= 2: return
    buf = (st % 4) * BUF
    a.e(f"s_add_u32 s59, s60, {st}")
    a.e("s_and_b32 s59, s59, 7")
    a.e("s_lshl_b32 s58, s59, 7")
    a.e("s_mul_i32 s59, s59, 176128")
    for t in range(4):
        a.e(f"s_add_u32 m0, s62, {buf + t*1024}")
        a.e("s_nop 0")
        a.vm_op(f"buffer_load_dwordx4 v{2+t}, s[8:11], s58 offen lds", ("st", st))
    for gu in range(2):
        for i in range(3):
            a.e(f"s_add_u32 m0, s63, {buf + gu*12288 + i*1024}")
            a.e("s_nop 0")
            a.vm_op(f"buffer_load_dwordx4 v{6+i}, s[{12+4*gu}:{15+4*gu}], s59 offen lds", ("st", st))
def issueW(qp):
    a.e(f"s_add_u32 s58, s56, {qp}")
    a.e("s_and_b32 s58, s58, 3")
    a.e("s_mul_i32 s58, s58, 327680")
    a.e("s_add_u32 s58, s58, s65")
    for i in range(10):
        a.e(f"s_add_u32 m0, s64, {qp*BUF + i*1024}")
        if i: a.e("s_add_u32 s58, s58, 8192")
        else: a.e("s_nop 0")
        a.vm_op(f"buffer_load_dwordx4 v{9 + (i & 1)}, s[24:27], s58 offen lds", ("st", 8 + qp))

a.stamp("L")
issue(0)
if 'codepf' in OPT:
    a.e("s_getpc_b64 s[58:59]")
    a.e("s_and_b32 s58, s58, 0xffffff00")
    a.e("s_lshl_b32 s61, s55, 13")
    a.e("v_lshlrev_b32 v26, 7, v1")
    a.e("v_add_u32 v26, s61, v26")
    a.e("v_min_u32 v26, CODE_END_OFF, v26")
    a.vm_op("global_load_dword v27, v26, s[58:59]", ("st", 1))
issue(1)
a.e("v_and_b32 v21, 1, v21")
a.e("v_lshlrev_b32 v21, 1, v21")
a.e("v_xor_b32 v22, v22, v21")
a.e("s_lshl_b32 s58, s57, 7")
a.e("v_add_u32 v20, s58, v20")
a.e("v_lshl_add_u32 v9, v22, 4, v20")
a.e("v_xor_b32 v22, 4, v22")
a.e("v_lshl_add_u32 v10, v22, 4, v20")
srd(a, 24, 42, 1376 * 1024)
srd(a, 20, 48, H_BYTES)
srd(a, 32, 46, 256)
a.e("s_mul_i32 s64, s55, 10240")
a.e("s_mul_i32 s65, s55, 81920")
a.e("s_lshr_b32 s58, s2, 3")
a.e("s_lshl_b32 s58, s58, 2")
a.e("s_add_u32 s58, s58, s55")
a.e("s_mul_i32 s58, s58, 11008")
a.e("s_add_u32 s4, s42, s58")
a.e("s_addc_u32 s5, s43, 0")
srd(a, 28, 48, H_BYTES + 4096)
a.stamp("L")
PF0 = int([o[3:] for o in OPT if o.startswith('pf=')][0]) if any(o.startswith('pf=') for o in OPT) else 0
for s in range(0, 8):
    a.wait(vm_tags=[("st", s)])
    if 'nobar' not in OPT or s == 0: a.e("s_barrier")
    if s in (0, 3): a.stamp("L")
    if 'nowdpf' not in OPT and PF0 <= s < PF0 + 6:
        k0 = (s - PF0) * 15
        for k in range(k0, min(k0 + 15, 86)):
            a.e(f"s_load_dword s6, s[4:5], {k*128}")
    if s + 2 < 8: issue(s + 2)
    else: issueW(s - 6)
a.stamp("L")
a.e("s_barrier")
issueW(2)
issueW(3)
a.stamp("L")
XR = 32
a.e("s_add_u32 s58, s55, 40")
a.e("s_lshl_b32 s58, s58, 15")
for i in range(4):
    a.vm_op(f"buffer_load_dwordx4 v[{XR+4*i}:{XR+4*i+3}], v{9 + (i & 1)}, s[24:27], s58 offen", "xr")
    if i < 3: a.e("s_add_u32 s58, s58, 8192")
a.e(f"s_mul_i32 s58, s55, {BUF}")
a.e("s_lshl_b32 s59, s57, 12")
if 'norot2' in OPT: a.e("s_mov_b32 s59, 0")
a.e("s_add_u32 s58, s58, s59")
a.e("v_lshlrev_b32 v14, 4, v1")
a.e("v_add_u32 v14, s58, v14")
a.e("v_mov_b32 v17, 0")
a.e("v_and_b32 v18, 15, v1")
a.e("v_lshlrev_b32 v18, 2, v18")
a.e("s_lshr_b32 s59, s56, 1")
a.e("s_lshl_b32 s61, s59, 7")
a.e(f"s_add_u32 s61, s61, {H_BYTES}")
a.e("s_lshl_b32 s59, s59, 4")
a.wait_all_vm()
a.stamp("L")
a.e("s_barrier")
a.stamp("L")
a.e("s_cmp_lg_u32 s55, 0")
a.e("s_cbranch_scc1 L_POLLDONE")
a.e("s_mov_b32 s3, 0")
a.label("L_POLLC")
a.e("s_add_u32 s3, s3, 1")
a.e("s_cmp_gt_u32 s3, 0x40000")
a.e("s_cbranch_scc1 L_POLLDONE")
a.e("buffer_load_dword v20, v17, s[32:35], s59 offen sc1")
a.e("s_waitcnt vmcnt(0)")
a.e("v_cmp_ne_u32 vcc, 16, v20")
a.e("s_cbranch_vccnz L_POLLC")
a.label("L_POLL")
a.e("s_add_u32 s3, s3, 1")
a.e("s_cmp_gt_u32 s3, 0x40000")
a.e("s_cbranch_scc1 L_POLLDONE")
a.e("buffer_load_dword v20, v18, s[28:31], s61 offen sc1")
a.e("s_waitcnt vmcnt(0)")
a.e("v_cmp_ne_u32 vcc, 1, v20")
a.e("s_cbranch_vccnz L_POLL")
a.label("L_POLLDONE")
a.e("s_barrier")
a.stamp("L")
for q in range(4):
    a.e(f"ds_write_b128 v14, v[{XR+4*q}:{XR+4*q+3}] offset:{q*1024}")
a.e("s_waitcnt lgkmcnt(0)")
a.e("s_barrier")
a.dump_stamps("L")
a.e("s_endpgm")

a.reset()
a.e(".p2align 6")
a.label("L_COMPUTE")
a.e("s_lshr_b32 s63, s54, 2")
a.e("v_and_b32 v20, 15, v1")
a.e("v_lshrrev_b32 v21, 4, v1")
a.e("v_bfe_u32 v22, v20, 1, 3")
a.e("v_xor_b32 v22, v22, v21")
a.e("v_lshlrev_b32 v22, 4, v22")
a.e("v_lshl_add_u32 v22, v20, 7, v22")
a.e("s_lshl_b32 s58, s55, 12")
a.e("v_add_u32 v2, s58, v22")
a.e("v_xor_b32 v3, 64, v2")
a.e(f"v_add_u32 v4, {2*BUF}, v2")
a.e(f"v_add_u32 v5, {2*BUF}, v3")
a.e("v_bfe_u32 v22, v1, 2, 2")
a.e("v_lshl_add_u32 v22, v21, 3, v22")
a.e("v_mul_u32_u24 v22, 192, v22")
a.e("v_and_b32 v23, 3, v1")
a.e("v_lshl_add_u32 v22, v23, 3, v22")
a.e("v_add_u32 v22, 16384, v22")
a.e("v_and_b32 v23, 1, v21")
a.e("s_mul_i32 s62, s63, s53")
for ft in range(3):
    a.e(f"s_add_u32 s58, s62, {ft}")
    a.e("v_xor_b32 v24, s58, v23")
    a.e(f"v_lshl_add_u32 v{6+ft}, v24, 5, v22")
    a.e(f"v_add_u32 v{9+ft}, {2*BUF}, v{6+ft}")
a.e("v_lshlrev_b32 v24, 10, v23")
a.e("v_lshrrev_b32 v25, 1, v21")
a.e("v_lshl_add_u32 v24, v25, 8, v24")
a.e("v_lshl_add_u32 v24, v20, 4, v24")
a.e("s_lshl_b32 s58, s50, 3")
a.e("s_lshl_b32 s59, s55, 1")
a.e("s_add_u32 s58, s58, s59")
a.e("s_lshl_b32 s58, s58, 10")
a.e("v_add_u32 v12, s58, v24")
a.e(f"v_mov_b32 v13, 0x{f2u(C1):08x}")
a.e("s_lshl_b32 s60, s52, 1")
a.e("s_add_u32 s60, s60, s62")
a.e("s_lshl_b32 s61, s50, 7")
a.e("s_lshl_b32 s58, s51, 2")
a.e("s_add_u32 s61, s61, s58")
a.e(f"s_add_u32 s61, s61, {H_BYTES}")
a.e("s_waitcnt lgkmcnt(0)")
srd(a, 20, 48, H_BYTES)
srd(a, 28, 44, 2048 * 1024)
srd(a, 32, 46, 256)
srd(a, 24, 48, H_BYTES + 4096)
a.e("s_cmp_lg_u32 s54, 0")
a.e("s_cbranch_scc1 L_NOCLR")
a.e("v_mov_b32 v24, 0")
a.e("v_mov_b32 v25, 1")
a.e("s_lshl_b32 s58, s50, 4")
a.e("s_mov_b64 exec, 1")
a.e("buffer_store_dword v24, v24, s[24:27], s61 offen sc1")
a.e("s_waitcnt vmcnt(0)")
a.e("buffer_atomic_add v25, v24, s[32:35], s58 offen sc1")
a.e("s_mov_b64 exec, -1")
a.label("L_NOCLR")
if 'prio' in OPT: a.e("s_setprio 2")

def WF(j): return 16 + 4 * j
def XF(n, mi): return 40 + 8 * (n & 1) + 4 * mi
def ACC(j, mi): return 56 + 8 * j + 4 * mi
def read_x(n):
    if 'noread' in OPT and n > 1: return
    st, s2 = n >> 1, n & 1
    b = st % 4
    reg = (2 if b < 2 else 4) + s2
    for mi in range(2):
        a.lds_op(f"ds_read_b128 v[{XF(n,mi)}:{XF(n,mi)+3}], v{reg} offset:{(b & 1) * BUF + mi * 2048}", ("x", n))
def read_w(n, j):
    if 'noread' in OPT and n > 1: return
    st, s2 = n >> 1, n & 1
    b = st % 4
    ft, gu = j >> 1, j & 1
    reg = (6 if b < 2 else 9) + ft
    for h in range(2):
        if 'halfread' in OPT and h == 1 and n > 0: continue
        off = (b & 1) * BUF + gu * 12288 + s2 * 6144 + h * 768
        a.lds_op(f"ds_read_b64_tr_b16 v[{WF(j)+2*h}:{WF(j)+2*h+1}], v{reg} offset:{off}", ("w", n, j))

a.e("s_barrier")
a.stamp("C")
read_x(0)
for j in range(6): read_w(0, j)
NS = 16
BJ = 0
for n in range(NS):
    st, s2 = n >> 1, n & 1
    nxt = n + 1 < NS
    if s2 == 1 and nxt:
        a.e("s_barrier")
        if st in (1, 3, 5): a.stamp("C")
    for j in range(6):
        a.wait(lds_tags=[("w", n, j), ("x", n)])
        if not nxt and j == 5:
            a.e("s_barrier")
        for mi in range(2):
            cin = "0" if n == 0 else f"v[{ACC(j,mi)}:{ACC(j,mi)+3}]"
            if 'nomfma' in OPT and n > 0 and mi == 1: continue
            a.e(f"v_mfma_f32_16x16x32_bf16 v[{ACC(j,mi)}:{ACC(j,mi)+3}], v[{WF(j)}:{WF(j)+3}], v[{XF(n,mi)}:{XF(n,mi)+3}], {cin}")
        if nxt:
            if j == 0: read_x(n + 1)
            read_w(n + 1, j)
a.e("s_nop 7")
a.stamp("C")
T = 104
for ft in range(3):
    if ft == 2:
        a.e("s_cmp_lt_u32 s53, 3")
        a.e("s_cbranch_scc1 L_EPI_DONE")
    G, U = ACC(2 * ft, 0), ACC(2 * ft + 1, 0)
    rs = range(8)
    for r in rs: a.e(f"v_mul_f32 v{T+r}, v{G+r}, v{G+r}")
    for r in rs: a.e(f"v_fmamk_f32 v{T+r}, v{T+r}, 0x{f2u(C2):08x}, v13")
    for r in rs: a.e(f"v_mul_f32 v{T+r}, v{T+r}, v{G+r}")
    for r in rs: a.e(f"v_exp_f32 v{T+r}, v{T+r}")
    for r in rs: a.e(f"v_mul_f32 v{T+8+r}, v{G+r}, v{U+r}")
    for r in rs: a.e(f"v_add_f32 v{T+r}, 1.0, v{T+r}")
    for r in rs: a.e(f"v_rcp_f32 v{T+r}, v{T+r}")
    a.e("s_lshr_b32 s58, s60, 1")
    for r in rs: a.e(f"v_mul_f32 v{T+r}, v{T+r}, v{T+8+r}")
    O = 136 + 4 * ft
    for i in range(4):
        a.e(f"v_cvt_pk_bf16_f32 v{O+i}, v{T+2*i}, v{T+2*i+1}")
    a.e("s_lshl_b32 s58, s58, 17")
    a.e("s_and_b32 s59, s60, 1")
    a.e("s_lshl_b32 s59, s59, 9")
    a.e(f"v_permlane16_swap_b32 v{O}, v{O+2}")
    a.e(f"v_permlane16_swap_b32 v{O+1}, v{O+3}")
    a.e("s_add_u32 s58, s58, s59")
    a.e("s_add_u32 s60, s60, 1")
    if 'nostore' not in OPT:
        a.e(f"buffer_store_dwordx4 v[{O}:{O+3}], v12, s[20:23], s58 offen {'' if 'plainst' in OPT else 'sc0 sc1' if 'sc01' in OPT else 'sc1 nt' if 'sc1nt' in OPT else 'sc1'}")
a.label("L_EPI_DONE")
a.stamp("C")
a.e("v_lshrrev_b32 v21, 4, v1")
a.e("v_and_b32 v23, 1, v21")
a.e("v_bfe_u32 v22, v1, 2, 2")
a.e("v_lshl_add_u32 v22, v21, 3, v22")
a.e("v_lshlrev_b32 v22, 7, v22")
a.e("v_and_b32 v24, 1, v1")
a.e("v_lshl_add_u32 v22, v24, 3, v22")
a.e("v_bfe_u32 v24, v1, 1, 1")
a.e("v_lshl_add_u32 v22, v24, 4, v22")
a.e(f"s_mul_i32 s58, s55, {BUF}")
a.e("v_add_u32 v22, s58, v22")
a.e("v_bfe_u32 v24, v1, 3, 1")
a.e("v_lshl_add_u32 v24, v23, 1, v24")
a.e("v_lshlrev_b32 v24, 1, v24")
for j in range(4):
    a.e(f"v_xor_b32 v25, {2*j}, v24")
    a.e(f"v_lshl_add_u32 v{2+j}, v25, 4, v22")
a.e("v_lshlrev_b32 v14, 4, v1")
a.e("s_lshl_b32 s59, s63, 13")
a.e("s_add_u32 s58, s58, s59")
a.e("v_add_u32 v15, s58, v14")
a.e("s_lshl_b32 s58, s56, 12")
a.e("s_lshl_b32 s59, s63, 11")
a.e("s_add_u32 s58, s58, s59")
a.e("v_add_u32 v6, s58, v14")
a.e("s_add_u32 s64, s55, s56")
a.e("s_and_b32 s64, s64, 3")
a.e("s_mul_i32 s64, s64, 10")
a.e("s_mov_b32 s65, s57")
if 'norot2' in OPT: a.e("s_mov_b32 s65, 0")
a.e("s_mov_b32 s62, s65")
a.e("s_lshl_b32 s60, s65, 12")
a.e("s_waitcnt vmcnt(0)")
a.stamp("C")
a.e("s_barrier")
a.e("s_cmp_lg_u32 s54, 0")
a.e("s_cbranch_scc1 L_NOFLAG")
a.e("v_mov_b32 v24, 1")
a.e("v_mov_b32 v25, 0")
a.e("s_mov_b64 exec, 1")
a.e("buffer_store_dword v24, v25, s[24:27], s61 offen sc1")
a.e("s_mov_b64 exec, -1")
a.label("L_NOFLAG")
def HB(i, mi): return 80 + i * 8 + 4 * mi
def AFR(i, j): return 16 + (i & 1) * 16 + 4 * j
def ACC2(j, mi): return 48 + 16 * mi + 4 * j
def h_loads(i):
    if i < 10:
        a.e("s_add_u32 s58, s64, s65")
        a.e("s_lshl_b32 s58, s58, 17")
        a.e("s_add_u32 s65, s65, 1")
        a.e("s_cmp_eq_u32 s65, 10")
        a.e("s_cselect_b32 s65, 0, s65")
    else:
        a.e("s_add_u32 s58, s55, 40")
        a.e("s_lshl_b32 s58, s58, 17")
    for mi in range(2):
        a.vm_op(f"buffer_load_dwordx4 v[{HB(i,mi)}:{HB(i,mi)+3}], v6, s[20:23], s58 offen offset:{mi*1024} sc1", ("h", i))
def a_addr(i):
    if i < 10:
        a.e("s_lshl_b32 s59, s62, 12")
        a.e("s_add_u32 s62, s62, 1")
        a.e("s_cmp_eq_u32 s62, 10")
        a.e("s_cselect_b32 s62, 0, s62")
        sreg = "s59"
    else: sreg = "s60"
    for j in range(4): a.e(f"v_add_u32 v{8+j}, {sreg}, v{2+j}")
def a_read(i, j):
    for hh in range(2):
        a.lds_op(f"ds_read_b64_tr_b16 v[{AFR(i,j)+2*hh}:{AFR(i,j)+2*hh+1}], v{8+j} offset:{hh*512}", ("a", i, j))
a.vm = []
a_addr(0)
for j in range(4): a_read(0, j)
a.wait_all_lds()
a.e("s_barrier")
a.stamp("C")
for i in range(11): h_loads(i)
for i in range(11):
    if i + 1 < 11: a_addr(i + 1)
    if i == 9: a.e("s_barrier")
    a.wait(vm_tags=[("h", i)])
    if i == 0: a.stamp("C")
    for j in range(4):
        a.wait(lds_tags=[("a", i, j)])
        for mi in range(2):
            cin = "0" if i == 0 else f"v[{ACC2(j,mi)}:{ACC2(j,mi)+3}]"
            a.e(f"v_mfma_f32_16x16x32_bf16 v[{ACC2(j,mi)}:{ACC2(j,mi)+3}], v[{AFR(i,j)}:{AFR(i,j)+3}], v[{HB(i,mi)}:{HB(i,mi)+3}], {cin}")
            if mi == 0 and i + 1 < 11: a_read(i + 1, j)
a.stamp("C")
a.e("s_barrier")
a.e("s_nop 7")
for mi in range(2):
    for j in range(4):
        a.e(f"ds_write_b128 v15, v[{ACC2(j,mi)}:{ACC2(j,mi)+3}] offset:{mi*4096 + j*1024}")
a.e("s_lshl_b32 s58, s55, 12")
a.e("s_lshl_b32 s59, s63, 11")
a.e("s_add_u32 s58, s58, s59")
a.e("v_add_u32 v8, s58, v14")
a.e(f"v_add_u32 v9, {2*BUF}, v8")
a.e("s_lshl_b32 s58, s56, 6")
a.e("s_lshl_b32 s59, s55, 4")
a.e("s_add_u32 s58, s58, s59")
a.e("s_lshl_b32 s58, s58, 10")
a.e("s_lshl_b32 s59, s57, 7")
a.e("s_add_u32 s58, s58, s59")
a.e("s_lshl_b32 s59, s63, 6")
a.e("s_add_u32 s58, s58, s59")
a.e("v_and_b32 v10, 15, v1")
a.e("v_lshlrev_b32 v10, 10, v10")
a.e("v_bfe_u32 v11, v1, 4, 1")
a.e("v_lshl_add_u32 v10, v11, 5, v10")
a.e("v_lshrrev_b32 v11, 5, v1")
a.e("v_lshl_add_u32 v10, v11, 4, v10")
a.wait_all_lds()
a.e("s_barrier")
for src in range(4):
    for jj in range(2):
        r = 80 + 8 * src + 4 * jj
        a.e(f"ds_read_b128 v[{r}:{r+3}], v{8 + (src >> 1)} offset:{(src & 1)*BUF + jj*1024}")
a.e("s_waitcnt lgkmcnt(4)")
for k in range(8): a.e(f"v_add_f32 v{80+k}, v{80+k}, v{88+k}")
a.e("s_waitcnt lgkmcnt(0)")
for k in range(8): a.e(f"v_add_f32 v{96+k}, v{96+k}, v{104+k}")
for k in range(8): a.e(f"v_add_f32 v{80+k}, v{80+k}, v{96+k}")
for k in range(4): a.e(f"v_cvt_pk_bf16_f32 v{16+k}, v{80+2*k}, v{80+2*k+1}")
a.e("s_nop 1")
a.e("v_permlane16_swap_b32 v16, v18")
a.e("v_permlane16_swap_b32 v17, v19")
a.e("s_nop 1")
a.e("buffer_store_dwordx4 v[16:19], v10, s[28:31], s58 offen")
a.dump_stamps("C")
a.label("L_END")
a.e("s_endpgm")
a.label("L_CODE_END")

HDR = open("standalone__glu_gated_geglu__prompt.s.ref").read().split("; Override")[0]
out = HDR + "; @launch grid=(256,1,1) block=(768,1,1) lds=163840\n"
out += f'.amdgcn_target "amdgcn-amd-amdhsa--gfx950"\n.text\n.globl {KN}\n.p2align 8\n.type {KN},@function\n'
out += f".set CODE_END_OFF, L_CODE_END - {KN} - 1024\n"
out += a.text() + f"""
.section .rodata,"a"
.p2align 6
.amdhsa_kernel {KN}
  .amdhsa_next_free_vgpr 168
  .amdhsa_next_free_sgpr 102
  .amdhsa_accum_offset 168
  .amdhsa_group_segment_fixed_size 0
  .amdhsa_kernarg_size 56
  .amdhsa_user_sgpr_count 2
  .amdhsa_user_sgpr_kernarg_segment_ptr 1
  .amdhsa_system_sgpr_workgroup_id_x 1
.end_amdhsa_kernel
"""
open(sys.argv[1], "w").write(out)
```

```python
import sys, struct
OPT = set(sys.argv[2:])
DIAG = 'diag' in OPT
KN = "standalone__glu_gated_geglu__prompt_kernel"
def f2u(x): return struct.unpack("<I", struct.pack("<f", x))[0]

class Asm:
    def __init__(self):
        self.lines = []; self.lds = []; self.vm = []; self.nst = 0
    def e(self, s): self.lines.append("    " + s)
    def label(self, s): self.lines.append(s + ":")
    def c(self, s): self.lines.append("    ; " + s)
    def reset(self): self.lds = []; self.vm = []
    def lds_op(self, s, tag=None): self.e(s); self.lds.append(tag)
    def vm_op(self, s, tag=None): self.e(s); self.vm.append(tag)
    def _need(self, q, tags):
        last = -1
        for i, t in enumerate(q):
            if t in tags: last = i
        return last
    def wait(self, lds_tags=(), vm_tags=()):
        parts = []
        if vm_tags:
            last = self._need(self.vm, vm_tags)
            if last >= 0:
                n = len(self.vm) - 1 - last
                assert n <= 63, n
                parts.append(f"vmcnt({n})"); self.vm = self.vm[last + 1:]
        if lds_tags:
            last = self._need(self.lds, lds_tags)
            if last >= 0:
                n = min(len(self.lds) - 1 - last, 15)
                parts.append(f"lgkmcnt({n})")
                self.lds = self.lds[len(self.lds) - n:] if n else []
        if parts: self.e("s_waitcnt " + " ".join(parts))
    def wait_all_lds(self): self.e("s_waitcnt lgkmcnt(0)"); self.lds = []
    def wait_all_vm(self): self.e("s_waitcnt vmcnt(0)"); self.vm = []
    def text(self): return "\n".join(self.lines)
    def stamp(self, k):
        if not DIAG: return
        op = "s_memtime" if 'clk' in OPT else "s_memrealtime"
        self.e(f"{op} s[{68+2*k}:{69+2*k}]")
        self.e("s_waitcnt lgkmcnt(0)"); self.lds = []
    def dump_stamps(self, n):
        if not DIAG: return
        self.e("s_waitcnt vmcnt(0)")
        self.e("s_memrealtime s[66:67]")
        self.e("s_waitcnt lgkmcnt(0)")
        self.e("s_mov_b32 s22, 0x10000000")
        self.e("s_lshl_b32 s64, s2, 4"); self.e("s_add_u32 s64, s64, s54"); self.e("s_lshl_b32 s64, s64, 7")
        self.e("s_add_u32 s64, s64, 0x4000000")
        self.e("v_mov_b32 v1, 0")
        for k in range(n):
            self.e(f"v_mov_b32 v2, s{68+2*k}")
            self.e(f"buffer_store_dword v2, v1, s[20:23], s64 offen offset:{4*k}")
        self.e("v_mov_b32 v3, s66")
        self.e(f"buffer_store_dword v3, v1, s[20:23], s64 offen offset:{4*n}")
        self.e("v_mov_b32 v3, s3")
        self.e(f"buffer_store_dword v3, v1, s[20:23], s64 offen offset:120")

H_BYTES = 43 * 128 * 1024
C1 = -2.0 * 1.4426950408889634 * 0.7978845608028654
C2 = C1 * 0.044715
BUF = 40960
SPIN = 0x40000
HOFF = [int(o[5:]) for o in OPT if o.startswith('hoff=')]
HOFF = (HOFF[0] << 20) if HOFF else 0
def srd(a, d, lo, nbytes):
    if lo == 48 and HOFF:
        a.e(f"s_add_u32 s{d}, s{lo}, {HOFF}")
        a.e(f"s_addc_u32 s{d+1}, s{lo+1}, 0")
        a.e(f"s_and_b32 s{d+1}, s{d+1}, 0xffff")
        a.e(f"s_mov_b32 s{d+2}, {nbytes}")
        a.e(f"s_mov_b32 s{d+3}, 0x20000")
        return
    a.e(f"s_mov_b32 s{d}, s{lo}")
    a.e(f"s_and_b32 s{d+1}, s{lo+1}, 0xffff")
    a.e(f"s_mov_b32 s{d+2}, {nbytes}")
    a.e(f"s_mov_b32 s{d+3}, 0x20000")

a = Asm()
a.label(KN)
a.e("s_cmp_ge_u32 s2, 256")
a.e("s_cbranch_scc1 L_END")
a.e("s_load_dwordx8 s[36:43], s[0:1], 0")
a.e("s_load_dwordx4 s[44:47], s[0:1], 32")
a.e("s_load_dwordx2 s[48:49], s[0:1], 48")
if DIAG:
    a.e("s_memrealtime s[68:69]")
    for k in range(1, 15): a.e(f"s_mov_b32 s{68+2*k}, 0")
a.e("v_and_b32 v1, 63, v0")
a.e("v_lshrrev_b32 v2, 6, v0")
a.e("s_and_b32 s58, s2, 7")
a.e("v_readfirstlane_b32 s54, v2")
a.e("s_lshr_b32 s59, s2, 3")
a.e("s_and_b32 s50, s58, 1")
a.e("s_lshl_b32 s50, s50, 3")
a.e("s_and_b32 s57, s59, 7")
a.e("s_add_u32 s50, s50, s57")
a.e("s_lshr_b32 s51, s58, 1")
a.e("s_lshl_b32 s51, s51, 2")
a.e("s_lshr_b32 s61, s59, 3")
a.e("s_add_u32 s51, s51, s61")
a.e("s_mul_i32 s52, s51, 43")
a.e("s_add_u32 s53, s52, 43")
a.e("s_lshr_b32 s52, s52, 4")
a.e("s_lshr_b32 s53, s53, 4")
a.e("s_sub_u32 s53, s53, s52")
a.e("s_lshl_b32 s56, s58, 2")
a.e("s_add_u32 s56, s56, s61")
a.e("s_and_b32 s55, s54, 3")
a.e("s_mov_b32 s3, 0")
a.e("s_cmp_ge_u32 s54, 4")
a.e("s_cbranch_scc1 L_COMPUTE")

a.c("LOADER")
a.e("s_lshl_b32 s60, s61, 1")
a.e("s_add_u32 s60, s60, s57")
a.e("v_lshrrev_b32 v20, 3, v1")
a.e("v_lshrrev_b32 v21, 4, v1")
a.e("v_and_b32 v22, 7, v1")
a.e("v_xor_b32 v24, v22, v21")
a.e("v_xor_b32 v23, 4, v24")
a.e("s_lshl_b32 s58, s50, 7")
a.e("s_lshl_b32 s59, s55, 5")
a.e("s_add_u32 s58, s58, s59")
a.e("s_lshl_b32 s58, s58, 10")
a.e("v_lshlrev_b32 v20, 10, v20")
a.e("v_add_u32 v25, s58, v20")
a.e("v_lshl_add_u32 v2, v24, 4, v25")
a.e("v_lshl_add_u32 v3, v23, 4, v25")
a.e("v_add_u32 v3, 8192, v3")
a.e("v_add_u32 v4, 16384, v2")
a.e("v_add_u32 v5, 16384, v3")
a.e("s_mul_i32 s58, s55, 44032")
a.e("s_lshl_b32 s59, s52, 6")
a.e("s_add_u32 s58, s58, s59")
a.e("s_movk_i32 s59, 2752")
for i in range(3):
    a.e(f"v_add_u32 v26, {64*i}, v1")
    a.e("v_mul_u32_u24 v27, 171, v26")
    a.e("v_lshrrev_b32 v27, 11, v27")
    a.e("v_mul_u32_u24 v28, 12, v27")
    a.e("v_sub_u32 v28, v26, v28")
    a.e("v_lshrrev_b32 v29, 2, v27")
    a.e("v_and_b32 v29, 2, v29")
    a.e("v_xor_b32 v28, v28, v29")
    a.e("v_mul_u32_u24 v27, s59, v27")
    a.e("v_lshl_add_u32 v27, v28, 4, v27")
    a.e(f"v_add_u32 v{6+i}, s58, v27")
a.e("s_lshl_b32 s62, s55, 12")
a.e("s_mul_i32 s63, s55, 3072")
a.e("s_add_u32 s63, s63, 16384")
a.e("s_waitcnt lgkmcnt(0)")
srd(a, 8, 36, 2048 * 1024)
srd(a, 12, 38, 512 * 2752)
srd(a, 16, 40, 512 * 2752)

def issue(st):
    buf = (st % 4) * BUF
    a.e(f"s_add_u32 s59, s60, {st}")
    a.e("s_and_b32 s59, s59, 7")
    a.e("s_lshl_b32 s58, s59, 7")
    a.e("s_mul_i32 s59, s59, 176128")
    for t in range(4):
        a.e(f"s_add_u32 m0, s62, {buf + t*1024}")
        a.e("s_nop 0")
        a.vm_op(f"buffer_load_dwordx4 v{2+t}, s[8:11], s58 offen lds", ("st", st))
    for gu in range(2):
        for i in range(3):
            a.e(f"s_add_u32 m0, s63, {buf + gu*12288 + i*1024}")
            a.e("s_nop 0")
            a.vm_op(f"buffer_load_dwordx4 v{6+i}, s[{12+4*gu}:{15+4*gu}], s59 offen lds", ("st", st))
def issueW(qp):
    a.e(f"s_add_u32 s58, s56, {qp}")
    a.e("s_and_b32 s58, s58, 3")
    a.e("s_mul_i32 s58, s58, 327680")
    a.e("s_add_u32 s58, s58, s65")
    for i in range(10):
        a.e(f"s_add_u32 m0, s64, {qp*BUF + i*1024}")
        if i: a.e("s_add_u32 s58, s58, 8192")
        else: a.e("s_nop 0")
        a.vm_op(f"buffer_load_dwordx4 v{9 + (i & 1)}, s[24:27], s58 offen lds", ("st", 8 + qp))

issue(0)
if 'codepf' in OPT:
    a.e("s_getpc_b64 s[58:59]")
    a.e("s_and_b32 s58, s58, 0xffffff00")
    a.e("s_lshl_b32 s61, s55, 13")
    a.e("v_lshlrev_b32 v26, 7, v1")
    a.e("v_add_u32 v26, s61, v26")
    a.e("v_min_u32 v26, CODE_END_OFF, v26")
    a.vm_op("global_load_dword v27, v26, s[58:59]", ("st", 1))
issue(1)
a.e("v_and_b32 v21, 1, v21")
a.e("v_lshlrev_b32 v21, 1, v21")
a.e("v_xor_b32 v22, v22, v21")
a.e("s_lshl_b32 s58, s57, 7")
a.e("v_add_u32 v20, s58, v20")
a.e("v_lshl_add_u32 v9, v22, 4, v20")
a.e("v_xor_b32 v22, 4, v22")
a.e("v_lshl_add_u32 v10, v22, 4, v20")
srd(a, 24, 42, 1376 * 1024)
srd(a, 20, 48, H_BYTES)
srd(a, 28, 44, 2048 * 1024)
srd(a, 32, 46, 256)
srd(a, 4, 48, H_BYTES + 4096)
a.e("s_mul_i32 s64, s55, 10240")
a.e("s_mul_i32 s65, s55, 81920")
def optval(name, d):
    v = [o[len(name)+1:] for o in OPT if o.startswith(name + '=')]
    return int(v[0]) if v else d
WPF = optval('wpf', 0); PF0 = optval('pf0', 1); NPF = optval('npf', 6)
a.e("s_lshr_b32 s58, s2, 3")
a.e("s_lshl_b32 s58, s58, 2")
a.e("s_add_u32 s58, s58, s55")
a.e("s_mul_i32 s58, s58, 11008")
a.e("s_add_u32 s96, s42, s58")
a.e("s_addc_u32 s97, s43, 0")
RW = 96
XR = 216
def issueR(qp):
    a.e(f"s_add_u32 s58, s56, {qp}")
    a.e("s_and_b32 s58, s58, 3")
    a.e("s_mul_i32 s58, s58, 327680")
    a.e("s_add_u32 s58, s58, s65")
    for i in range(10):
        r = RW + (qp - 1) * 40 + 4 * i
        a.vm_op(f"buffer_load_dwordx4 v[{r}:{r+3}], v{9 + (i & 1)}, s[24:27], s58 offen", ("r", qp))
        if i < 9: a.e("s_add_u32 s58, s58, 8192")
for s in range(0, 7):
    tags = [("st", s)]
    a.wait(vm_tags=tags); a.e("s_barrier")
    if s == 0: a.stamp(1)
    if WPF and PF0 <= s < PF0 + NPF:
        per = (WPF + NPF - 1) // NPF
        k0 = (s - PF0) * per
        for k in range(k0, min(k0 + per, WPF)):
            a.e(f"s_load_dword s95, s[96:97], {k*(11008//WPF)}")
    if s + 2 < 8: issue(s + 2)
def issueX():
    a.e("s_add_u32 s58, s55, 40")
    a.e("s_lshl_b32 s58, s58, 15")
    for i in range(4):
        a.vm_op(f"buffer_load_dwordx4 v[{XR+4*i}:{XR+4*i+3}], v{9 + (i & 1)}, s[24:27], s58 offen", "xr")
        if i < 3: a.e("s_add_u32 s58, s58, 8192")
if 'r3first' in OPT:
    issueR(3); issueX()
    a.wait(vm_tags=[("st", 7)])
    a.e("s_barrier")
    issueW(0)
    a.e("s_barrier")
    issueW(1); issueW(2)
else:
    issueW(0)
    a.wait(vm_tags=[("st", 7)])
    a.e("s_barrier")
    issueW(1)
    a.e("s_barrier")
    issueW(2); issueR(3); issueX()
a.e("v_lshlrev_b32 v11, 4, v1")
a.e("v_add_u32 v11, s64, v11")
a.e(f"v_add_u32 v12, {2*BUF}, v11")
a.stamp(4)
a.e("v_mov_b32 v17, 0")
a.e("s_lshr_b32 s59, s56, 1")
a.e("s_lshl_b32 s59, s59, 4")
a.label("L_POLLC")
a.e("buffer_load_dword v20, v17, s[32:35], s59 offen sc1")
a.e("s_add_u32 s3, s3, 1")
a.e(f"s_cmp_gt_u32 s3, {SPIN}")
a.e("s_cbranch_scc1 L_POLLC_DONE")
a.e("s_waitcnt vmcnt(0)")
a.e("v_cmp_gt_u32 vcc, 16, v20")
a.e("s_cbranch_vccnz L_POLLC")
a.label("L_POLLC_DONE")
a.wait_all_vm()
a.stamp(5)
a.e("s_barrier")
a.stamp(6)
for qp in range(3, 4):
    for i in range(10):
        r = RW + (qp - 1) * 40 + 4 * i
        a.e(f"ds_write_b128 v{11 if qp < 2 else 12}, v[{r}:{r+3}] offset:{(qp & 1)*BUF + i*1024}")
a.e("s_waitcnt lgkmcnt(0)")
a.e("s_branch L_G2")

a.reset()
a.e(".p2align 6")
a.label("L_COMPUTE")
a.e("s_and_b32 s62, s55, 1")
a.e("s_lshr_b32 s63, s55, 1")
a.e("v_and_b32 v20, 15, v1")
a.e("v_lshrrev_b32 v21, 4, v1")
a.e("v_bfe_u32 v22, v20, 1, 3")
a.e("v_xor_b32 v22, v22, v21")
a.e("v_lshlrev_b32 v22, 4, v22")
a.e("v_lshl_add_u32 v22, v20, 7, v22")
a.e("s_lshl_b32 s58, s62, 13")
a.e("v_add_u32 v2, s58, v22")
a.e("v_xor_b32 v3, 64, v2")
a.e(f"v_add_u32 v4, {2*BUF}, v2")
a.e(f"v_add_u32 v5, {2*BUF}, v3")
a.e("v_bfe_u32 v22, v1, 2, 2")
a.e("v_lshl_add_u32 v22, v21, 3, v22")
a.e("v_mul_u32_u24 v22, 192, v22")
a.e("v_and_b32 v23, 3, v1")
a.e("v_lshl_add_u32 v22, v23, 3, v22")
a.e("v_add_u32 v22, 16384, v22")
a.e("v_and_b32 v23, 1, v21")
a.e("s_mul_i32 s64, s63, s53")
for ft in range(3):
    a.e(f"s_add_u32 s58, s64, {ft}")
    a.e("v_xor_b32 v24, s58, v23")
    a.e(f"v_lshl_add_u32 v{6+ft}, v24, 5, v22")
    a.e(f"v_add_u32 v{9+ft}, {2*BUF}, v{6+ft}")
a.e("v_lshlrev_b32 v24, 10, v23")
a.e("v_lshrrev_b32 v25, 1, v21")
a.e("v_lshl_add_u32 v24, v25, 8, v24")
a.e("v_lshl_add_u32 v24, v20, 4, v24")
a.e("s_lshl_b32 s58, s50, 3")
a.e("s_lshl_b32 s59, s62, 2")
a.e("s_add_u32 s58, s58, s59")
a.e("s_lshl_b32 s58, s58, 10")
a.e("v_add_u32 v12, s58, v24")
a.e(f"v_mov_b32 v14, 0x{f2u(C1):08x}")
a.e(f"v_mov_b32 v15, 0x{f2u(C1):08x}")
a.e(f"s_mov_b32 s90, 0x{f2u(C2):08x}")
a.e(f"s_mov_b32 s91, 0x{f2u(C2):08x}")
a.e("s_mov_b32 s92, 1.0")
a.e("s_mov_b32 s93, 1.0")
a.e("s_lshl_b32 s60, s52, 1")
a.e("s_add_u32 s60, s60, s64")
for ft in range(3):
    a.e(f"s_add_u32 s58, s60, {ft}")
    a.e("s_lshr_b32 s59, s58, 1")
    a.e("s_lshl_b32 s59, s59, 17")
    a.e("s_and_b32 s58, s58, 1")
    a.e("s_lshl_b32 s58, s58, 9")
    a.e(f"s_add_u32 s{94+ft}, s58, s59")
a.e("s_lshl_b32 s61, s50, 1")
a.e("s_add_u32 s61, s61, s62")
a.e("s_lshl_b32 s61, s61, 7")
a.e("s_lshl_b32 s58, s51, 1")
a.e("s_add_u32 s58, s58, s63")
a.e("s_lshl_b32 s58, s58, 2")
a.e("s_add_u32 s61, s61, s58")
a.e(f"s_add_u32 s61, s61, {H_BYTES}")
a.e("v_mov_b32 v13, 0")
a.e("s_waitcnt lgkmcnt(0)")
srd(a, 20, 48, H_BYTES)
srd(a, 28, 44, 2048 * 1024)
srd(a, 32, 46, 256)
srd(a, 4, 48, H_BYTES + 4096)
a.e("s_cmp_lg_u32 s54, 4")
a.e("s_cbranch_scc1 L_NOCLR")
a.e("v_and_b32 v24, 1, v1")
a.e("v_lshlrev_b32 v24, 7, v24")
a.e("v_bfe_u32 v25, v1, 1, 1")
a.e("v_lshl_add_u32 v24, v25, 2, v24")
a.e("v_mov_b32 v25, 1")
a.e("s_lshl_b32 s58, s50, 4")
a.e("s_mov_b64 exec, 15")
a.e("buffer_store_dword v13, v24, s[4:7], s61 offen sc1")
a.e("s_mov_b64 exec, -1")
a.label("L_NOCLR")
if 'noprio' not in OPT: a.e("s_setprio 3")

def WF(n, j): return 16 + 24 * (n & 1) + 4 * j
def XF(n, mi): return 64 + 16 * (n & 1) + 4 * mi
def ACC(j, mi): return 96 + 16 * j + 4 * mi
def read_x(n, mis):
    st, s2 = n >> 1, n & 1
    b = st % 4
    reg = (2 if b < 2 else 4) + s2
    for mi in mis:
        a.lds_op(f"ds_read_b128 v[{XF(n,mi)}:{XF(n,mi)+3}], v{reg} offset:{(b & 1) * BUF + mi * 2048}", ("x", n, mi))
def read_w(n, j):
    st, s2 = n >> 1, n & 1
    b = st % 4
    ft, gu = j >> 1, j & 1
    reg = (6 if b < 2 else 9) + ft
    for h in range(2):
        off = (b & 1) * BUF + gu * 12288 + s2 * 6144 + h * 768
        a.lds_op(f"ds_read_b64_tr_b16 v[{WF(n,j)+2*h}:{WF(n,j)+2*h+1}], v{reg} offset:{off}", ("w", n, j))

a.e("s_barrier")
a.stamp(1)
read_w(0, 0)
read_x(0, range(4))
CLRB = 3
def cnt_add():
    a.e("s_cmp_lg_u32 s54, 4")
    a.e("s_cbranch_scc1 L_NOCNT")
    a.e("v_mov_b32 v192, 1")
    a.e("s_lshl_b32 s58, s50, 4")
    a.e("s_waitcnt vmcnt(0)")
    a.e("s_mov_b64 exec, 1")
    a.e("buffer_atomic_add v192, v13, s[32:35], s58 offen sc1")
    a.e("s_mov_b64 exec, -1")
    a.label("L_NOCNT")
for j in range(1, 6): read_w(0, j)
NS = 16
for n in range(NS):
    st, s2 = n >> 1, n & 1
    nxt = n + 1 < NS
    if s2 == 1:
        a.e("s_barrier")
        if st in (1, 3, 5): a.stamp(2 + (st >> 1))
        if st == 1: cnt_add()

    for j in range(6):
        for mi in range(4):
            if mi == 0 or j == 0:
                a.wait(lds_tags=[("w", n, j), ("x", n, mi)])
            cin = "0" if n == 0 else f"v[{ACC(j,mi)}:{ACC(j,mi)+3}]"
            a.e(f"v_mfma_f32_16x16x32_bf16 v[{ACC(j,mi)}:{ACC(j,mi)+3}], v[{WF(n,j)}:{WF(n,j)+3}], v[{XF(n,mi)}:{XF(n,mi)+3}], {cin}")
            if nxt:
                if j == 0 and mi == 0: read_w(n + 1, 0)
                if j == 0 and mi == 2: read_x(n + 1, [0, 1])
                if j == 1 and mi == 0: read_x(n + 1, [2, 3])
                if j == 1 and mi == 2: read_w(n + 1, 1)
                if j >= 2 and mi == 0: read_w(n + 1, j)
a.e("s_nop 7")
a.stamp(5)
T = 16
for ft in range(3):
    if ft == 2:
        a.e("s_cmp_lt_u32 s53, 3")
        a.e("s_cbranch_scc1 L_EPI_DONE")
    for pr in range(2):
        G, U = ACC(2 * ft, 2 * pr), ACC(2 * ft + 1, 2 * pr)
        t0 = T + 16 * pr
        p0 = t0 + 8
        ps = range(0, 8, 2)
        if 'nopk' not in OPT:
            for r in ps: a.e(f"v_pk_mul_f32 v[{t0+r}:{t0+r+1}], v[{G+r}:{G+r+1}], v[{G+r}:{G+r+1}]")
            for r in ps: a.e(f"v_pk_fma_f32 v[{t0+r}:{t0+r+1}], v[{t0+r}:{t0+r+1}], s[90:91], v[14:15]")
            for r in ps: a.e(f"v_pk_mul_f32 v[{t0+r}:{t0+r+1}], v[{t0+r}:{t0+r+1}], v[{G+r}:{G+r+1}]")
            for r in range(8): a.e(f"v_exp_f32 v{t0+r}, v{t0+r}")
            for r in ps: a.e(f"v_pk_mul_f32 v[{p0+r}:{p0+r+1}], v[{G+r}:{G+r+1}], v[{U+r}:{U+r+1}]")
            for r in ps: a.e(f"v_pk_add_f32 v[{t0+r}:{t0+r+1}], v[{t0+r}:{t0+r+1}], s[92:93]")
            for r in range(8): a.e(f"v_rcp_f32 v{t0+r}, v{t0+r}")
            a.e("s_nop 0")
            for r in ps: a.e(f"v_pk_mul_f32 v[{t0+r}:{t0+r+1}], v[{t0+r}:{t0+r+1}], v[{p0+r}:{p0+r+1}]")
        else:
            rs = range(8)
            for r in rs: a.e(f"v_mul_f32 v{t0+r}, v{G+r}, v{G+r}")
            for r in rs: a.e(f"v_fmamk_f32 v{t0+r}, v{t0+r}, 0x{f2u(C2):08x}, v14")
            for r in rs: a.e(f"v_mul_f32 v{t0+r}, v{t0+r}, v{G+r}")
            for r in rs: a.e(f"v_exp_f32 v{t0+r}, v{t0+r}")
            for r in rs: a.e(f"v_mul_f32 v{p0+r}, v{G+r}, v{U+r}")
            for r in rs: a.e(f"v_add_f32 v{t0+r}, 1.0, v{t0+r}")
            for r in rs: a.e(f"v_rcp_f32 v{t0+r}, v{t0+r}")
            a.e("s_nop 0")
            for r in rs: a.e(f"v_mul_f32 v{t0+r}, v{t0+r}, v{p0+r}")
        O = 64 + 8 * ft + 4 * pr
        for i in range(4): a.e(f"v_cvt_pk_bf16_f32 v{O+i}, v{t0+2*i}, v{t0+2*i+1}")
        a.e("s_nop 1")
        a.e(f"v_permlane16_swap_b32 v{O}, v{O+2}")
        a.e(f"v_permlane16_swap_b32 v{O+1}, v{O+3}")
        a.e(f"buffer_store_dwordx4 v[{O}:{O+3}], v12, s[20:23], s{94+ft} offen offset:{pr*2048} sc1")
a.label("L_EPI_DONE")
a.stamp(6)
a.e("s_waitcnt vmcnt(0)")
a.e("v_mov_b32 v88, 1")
a.e("s_mov_b64 exec, 1")
a.e("buffer_store_dword v88, v13, s[4:7], s61 offen sc1")
a.e("s_mov_b64 exec, -1")
a.e("s_setprio 0")
a.e("s_barrier")

a.reset()
a.label("L_G2")
a.e("s_lshr_b32 s63, s54, 2")
a.e("v_lshrrev_b32 v21, 4, v1")
a.e("v_and_b32 v23, 1, v21")
a.e("v_bfe_u32 v22, v1, 2, 2")
a.e("v_lshl_add_u32 v22, v21, 3, v22")
a.e("v_lshlrev_b32 v22, 7, v22")
a.e("v_and_b32 v24, 1, v1")
a.e("v_lshl_add_u32 v22, v24, 3, v22")
a.e("v_bfe_u32 v24, v1, 1, 1")
a.e("v_lshl_add_u32 v22, v24, 4, v22")
a.e(f"s_mul_i32 s58, s55, {BUF}")
a.e("v_add_u32 v22, s58, v22")
a.e("v_bfe_u32 v24, v1, 3, 1")
a.e("v_lshl_add_u32 v24, v23, 1, v24")
a.e("v_lshlrev_b32 v24, 1, v24")
for j in range(4):
    a.e(f"v_xor_b32 v25, {2*j}, v24")
    a.e(f"v_lshl_add_u32 v{2+j}, v25, 4, v22")
a.e("v_lshlrev_b32 v14, 4, v1")
a.e("s_lshl_b32 s60, s57, 12")
a.e("s_add_u32 s59, s58, s60")
a.e("v_add_u32 v7, s59, v14")
a.e("s_lshl_b32 s59, s63, 13")
a.e("s_add_u32 s58, s58, s59")
a.e("v_add_u32 v15, s58, v14")
a.e("s_lshl_b32 s58, s56, 12")
a.e("s_lshl_b32 s59, s63, 11")
a.e("s_add_u32 s58, s58, s59")
a.e("v_add_u32 v6, s58, v14")
a.e("s_add_u32 s64, s55, s56")
a.e("s_and_b32 s64, s64, 3")
a.e("s_mul_i32 s64, s64, 10")
a.e("s_mov_b32 s65, s57")
a.e("s_mov_b32 s62, s57")
a.e("v_and_b32 v24, 31, v1")
a.e("v_lshlrev_b32 v13, 2, v24")
a.e("v_lshrrev_b32 v24, 1, v24")
a.e("v_mul_u32_u24 v25, 43, v24")
a.e("v_add_u32 v26, 43, v25")
a.e("v_lshrrev_b32 v25, 4, v25")
a.e("v_lshrrev_b32 v26, 4, v26")
a.e("s_add_u32 s58, s64, 10")
a.e("v_cmp_gt_u32 s[90:91], s58, v25")
a.e("v_cmp_lt_u32 s[92:93], s64, v26")
a.e("s_and_b64 s[90:91], s[90:91], s[92:93]")
a.e("v_cmp_eq_u32 s[92:93], 15, v24")
a.e("s_or_b64 s[90:91], s[90:91], s[92:93]")
if 'allflags' in OPT: a.e("s_mov_b64 s[90:91], -1")
a.e("s_lshl_b32 s61, s56, 7")
a.e(f"s_add_u32 s61, s61, {H_BYTES}")
def HB(i, mi): return 96 + i * 8 + 4 * mi
def AFR(i, j): return 16 + (i & 1) * 16 + 4 * j
def ACC2(j, mi): return 48 + 16 * mi + 4 * j
def h_soff(i):
    if i < 10:
        a.e("s_add_u32 s58, s64, s65")
        a.e(f"s_lshl_b32 s{70+i if not DIAG else 8+i}, s58, 17")
        a.e("s_add_u32 s65, s65, 1")
        a.e("s_cmp_eq_u32 s65, 10")
        a.e("s_cselect_b32 s65, 0, s65")
    else:
        a.e("s_add_u32 s58, s55, 40")
        a.e(f"s_lshl_b32 s{70+i if not DIAG else 8+i}, s58, 17")
def HS(i): return f"s{70+i if not DIAG else 8+i}"
def h_loads(i, track=True):
    for mi in range(2):
        s_ = f"buffer_load_dwordx4 v[{HB(i,mi)}:{HB(i,mi)+3}], v6, s[20:23], {HS(i)} offen offset:{mi*1024} sc1"
        if track: a.vm_op(s_, ("h", i))
        else: a.e(s_)
def a_addr(i):
    if i < 10:
        a.e("s_lshl_b32 s59, s62, 12")
        a.e("s_add_u32 s62, s62, 1")
        a.e("s_cmp_eq_u32 s62, 10")
        a.e("s_cselect_b32 s62, 0, s62")
        sreg = "s59"
    else: sreg = "s60"
    for j in range(4): a.e(f"v_add_u32 v{8+j}, {sreg}, v{2+j}")
def a_read(i, j):
    for hh in range(2):
        a.lds_op(f"ds_read_b64_tr_b16 v[{AFR(i,j)+2*hh}:{AFR(i,j)+2*hh+1}], v{8+j} offset:{hh*512}", ("a", i, j))
for i in range(11): h_soff(i)
a_addr(0)
a.e("s_barrier")
a.stamp(7)
for j in range(4): a_read(0, j)
a.wait_all_lds()
a.e("s_barrier")
a.e("s_cmp_ge_u32 s54, 4")
a.e("s_cbranch_scc1 L_NOXW")
for q in range(4):
    a.e(f"ds_write_b128 v7, v[{XR+4*q}:{XR+4*q+3}] offset:{q*1024}")
a.e("s_waitcnt lgkmcnt(0)")
a.label("L_NOXW")
a.e("s_barrier")
a.label("L_POLL")
a.e("buffer_load_dword v80, v13, s[4:7], s61 offen sc1")
a.e("s_add_u32 s3, s3, 1")
a.e(f"s_cmp_gt_u32 s3, {SPIN}")
a.e("s_cbranch_scc1 L_POLLDONE")
a.e("s_waitcnt vmcnt(0)")
a.e("v_cmp_ne_u32 vcc, 1, v80")
a.e("s_and_b64 vcc, vcc, s[90:91]")
a.e("s_cbranch_vccnz L_POLL")
a.label("L_POLLDONE")
a.stamp(8)
for i in range(11): h_loads(i)
def check(i):
    b = HB(i, 0)
    a.e(f"v_max3_u32 v80, v{b}, v{b+1}, v{b+2}")
    a.e(f"v_max3_u32 v81, v{b+3}, v{b+4}, v{b+5}")
    a.e(f"v_max3_u32 v80, v80, v{b+6}, v{b+7}")
    a.e("v_max_u32 v80, v80, v81")
    a.e("v_cmp_eq_u32 vcc, -1, v80")
for i in range(11):
    if i + 1 < 11: a_addr(i + 1)
    a.wait(vm_tags=[("h", i)])
    if i == 0: a.stamp(9)
    for j in range(4):
        a.wait(lds_tags=[("a", i, j)])
        for mi in range(2):
            cin = "0" if i == 0 else f"v[{ACC2(j,mi)}:{ACC2(j,mi)+3}]"
            a.e(f"v_mfma_f32_16x16x32_bf16 v[{ACC2(j,mi)}:{ACC2(j,mi)+3}], v[{AFR(i,j)}:{AFR(i,j)+3}], v[{HB(i,mi)}:{HB(i,mi)+3}], {cin}")
            if mi == 0 and i + 1 < 11: a_read(i + 1, j)
a.stamp(10)
a.e("s_barrier")
a.e("s_nop 7")
for mi in range(2):
    for j in range(4):
        a.e(f"ds_write_b128 v15, v[{ACC2(j,mi)}:{ACC2(j,mi)+3}] offset:{mi*4096 + j*1024}")
a.e("s_lshl_b32 s58, s55, 12")
a.e("s_lshl_b32 s59, s63, 11")
a.e("s_add_u32 s58, s58, s59")
a.e("v_add_u32 v8, s58, v14")
a.e(f"v_add_u32 v9, {2*BUF}, v8")
a.e("s_lshl_b32 s58, s56, 6")
a.e("s_lshl_b32 s59, s55, 4")
a.e("s_add_u32 s58, s58, s59")
a.e("s_lshl_b32 s58, s58, 10")
a.e("s_lshl_b32 s59, s57, 7")
a.e("s_add_u32 s58, s58, s59")
a.e("s_lshl_b32 s59, s63, 6")
a.e("s_add_u32 s58, s58, s59")
a.e("v_and_b32 v10, 15, v1")
a.e("v_lshlrev_b32 v10, 10, v10")
a.e("v_bfe_u32 v11, v1, 4, 1")
a.e("v_lshl_add_u32 v10, v11, 5, v10")
a.e("v_lshrrev_b32 v11, 5, v1")
a.e("v_lshl_add_u32 v10, v11, 4, v10")
a.wait_all_lds()
a.e("s_barrier")
for src in range(4):
    for jj in range(2):
        r = 96 + 8 * src + 4 * jj
        a.e(f"ds_read_b128 v[{r}:{r+3}], v{8 + (src >> 1)} offset:{(src & 1)*BUF + jj*1024}")
a.e("s_waitcnt lgkmcnt(4)")
for k in range(0, 8, 2): a.e(f"v_pk_add_f32 v[{96+k}:{97+k}], v[{96+k}:{97+k}], v[{104+k}:{105+k}]")
a.e("s_waitcnt lgkmcnt(0)")
for k in range(0, 8, 2): a.e(f"v_pk_add_f32 v[{112+k}:{113+k}], v[{112+k}:{113+k}], v[{120+k}:{121+k}]")
for k in range(0, 8, 2): a.e(f"v_pk_add_f32 v[{96+k}:{97+k}], v[{96+k}:{97+k}], v[{112+k}:{113+k}]")
for k in range(4): a.e(f"v_cvt_pk_bf16_f32 v{16+k}, v{96+2*k}, v{96+2*k+1}")
a.e("s_nop 1")
a.e("v_permlane16_swap_b32 v16, v18")
a.e("v_permlane16_swap_b32 v17, v19")
OUTF = ' sc1' if 'outsc1' in OPT else ' nt' if 'outnt' in OPT else ''
a.e(f"buffer_store_dwordx4 v[16:19], v10, s[28:31], s58 offen{OUTF}")
a.dump_stamps(11)
a.label("L_END")
a.e("s_endpgm")
a.label("L_CODE_END")

HDR = open("standalone__glu_gated_geglu__prompt.s.ref").read().split("; Override")[0]
out = HDR + "; @launch grid=(256,1,1) block=(512,1,1) lds=163840\n"
out += f'.amdgcn_target "amdgcn-amd-amdhsa--gfx950"\n.text\n.globl {KN}\n.p2align 8\n.type {KN},@function\n'
out += f".set CODE_END_OFF, L_CODE_END - {KN} - 1024\n"
out += a.text() + f"""
.section .rodata,"a"
.p2align 6
.amdhsa_kernel {KN}
  .amdhsa_next_free_vgpr 256
  .amdhsa_next_free_sgpr 102
  .amdhsa_accum_offset 256
  .amdhsa_group_segment_fixed_size 0
  .amdhsa_kernarg_size 56
  .amdhsa_user_sgpr_count 2
  .amdhsa_user_sgpr_kernarg_segment_ptr 1
  .amdhsa_system_sgpr_workgroup_id_x 1
.end_amdhsa_kernel
"""
open(sys.argv[1], "w").write(out)
```

```python
import sys, struct
OPT = set(sys.argv[2:])
DIAG = 'diag' in OPT
KN = "standalone__glu_gated_geglu__prompt_kernel"
def f2u(x): return struct.unpack("<I", struct.pack("<f", x))[0]

class Asm:
    def __init__(self):
        self.lines = []; self.lds = []; self.vm = []; self.nst = 0
    def e(self, s): self.lines.append("    " + s)
    def label(self, s): self.lines.append(s + ":")
    def c(self, s): self.lines.append("    ; " + s)
    def reset(self): self.lds = []; self.vm = []
    def lds_op(self, s, tag=None): self.e(s); self.lds.append(tag)
    def vm_op(self, s, tag=None): self.e(s); self.vm.append(tag)
    def _need(self, q, tags):
        last = -1
        for i, t in enumerate(q):
            if t in tags: last = i
        return last
    def wait(self, lds_tags=(), vm_tags=()):
        parts = []
        if vm_tags:
            last = self._need(self.vm, vm_tags)
            if last >= 0:
                n = len(self.vm) - 1 - last
                assert n <= 63, n
                parts.append(f"vmcnt({n})"); self.vm = self.vm[last + 1:]
        if lds_tags:
            last = self._need(self.lds, lds_tags)
            if last >= 0:
                n = min(len(self.lds) - 1 - last, 15)
                parts.append(f"lgkmcnt({n})")
                self.lds = self.lds[len(self.lds) - n:] if n else []
        if parts: self.e("s_waitcnt " + " ".join(parts))
    def wait_all_lds(self): self.e("s_waitcnt lgkmcnt(0)"); self.lds = []
    def wait_all_vm(self): self.e("s_waitcnt vmcnt(0)"); self.vm = []
    def text(self): return "\n".join(self.lines)
    def stamp(self, k):
        if not DIAG: return
        op = "s_memtime" if 'clk' in OPT else "s_memrealtime"
        self.e(f"{op} s[{68+2*k}:{69+2*k}]")
        self.e("s_waitcnt lgkmcnt(0)"); self.lds = []
    def dump_stamps(self, n):
        if not DIAG: return
        self.e("s_waitcnt vmcnt(0)")
        self.e("s_memrealtime s[66:67]")
        self.e("s_waitcnt lgkmcnt(0)")
        self.e("s_mov_b32 s22, 0x10000000")
        self.e("s_lshl_b32 s64, s2, 4"); self.e("s_add_u32 s64, s64, s54"); self.e("s_lshl_b32 s64, s64, 7")
        self.e("s_add_u32 s64, s64, 0x4000000")
        self.e("v_mov_b32 v1, 0")
        for k in range(n):
            self.e(f"v_mov_b32 v2, s{68+2*k}")
            self.e(f"buffer_store_dword v2, v1, s[20:23], s64 offen offset:{4*k}")
        self.e("v_mov_b32 v3, s66")
        self.e(f"buffer_store_dword v3, v1, s[20:23], s64 offen offset:{4*n}")
        self.e("v_mov_b32 v3, s3")
        self.e(f"buffer_store_dword v3, v1, s[20:23], s64 offen offset:120")

H_BYTES = 43 * 128 * 1024
C1 = -2.0 * 1.4426950408889634 * 0.7978845608028654
C2 = C1 * 0.044715
BUF = 40960
SPIN = 0x40000
HOFF = [int(o[5:]) for o in OPT if o.startswith('hoff=')]
HOFF = (HOFF[0] << 20) if HOFF else 0
def srd(a, d, lo, nbytes):
    if lo == 48 and HOFF:
        a.e(f"s_add_u32 s{d}, s{lo}, {HOFF}")
        a.e(f"s_addc_u32 s{d+1}, s{lo+1}, 0")
        a.e(f"s_and_b32 s{d+1}, s{d+1}, 0xffff")
        a.e(f"s_mov_b32 s{d+2}, {nbytes}")
        a.e(f"s_mov_b32 s{d+3}, 0x20000")
        return
    a.e(f"s_mov_b32 s{d}, s{lo}")
    a.e(f"s_and_b32 s{d+1}, s{lo+1}, 0xffff")
    a.e(f"s_mov_b32 s{d+2}, {nbytes}")
    a.e(f"s_mov_b32 s{d+3}, 0x20000")

a = Asm()
a.label(KN)
a.e("s_cmp_ge_u32 s2, 256")
a.e("s_cbranch_scc1 L_END")
a.e("s_load_dwordx8 s[36:43], s[0:1], 0")
a.e("s_load_dwordx4 s[44:47], s[0:1], 32")
a.e("s_load_dwordx2 s[48:49], s[0:1], 48")
if DIAG:
    a.e("s_memrealtime s[68:69]")
    for k in range(1, 15): a.e(f"s_mov_b32 s{68+2*k}, 0")
a.e("v_and_b32 v1, 63, v0")
a.e("v_lshrrev_b32 v2, 6, v0")
a.e("s_and_b32 s58, s2, 7")
a.e("v_readfirstlane_b32 s54, v2")
a.e("s_lshr_b32 s59, s2, 3")
a.e("s_and_b32 s50, s58, 1")
a.e("s_lshl_b32 s50, s50, 3")
a.e("s_and_b32 s57, s59, 7")
a.e("s_add_u32 s50, s50, s57")
a.e("s_lshr_b32 s51, s58, 1")
a.e("s_lshl_b32 s51, s51, 2")
a.e("s_lshr_b32 s61, s59, 3")
a.e("s_add_u32 s51, s51, s61")
a.e("s_mul_i32 s52, s51, 43")
a.e("s_add_u32 s53, s52, 43")
a.e("s_lshr_b32 s52, s52, 4")
a.e("s_lshr_b32 s53, s53, 4")
a.e("s_sub_u32 s53, s53, s52")
a.e("s_lshl_b32 s56, s58, 2")
a.e("s_add_u32 s56, s56, s61")
a.e("s_and_b32 s55, s54, 3")
a.e("s_mov_b32 s3, 0")
a.e("s_cmp_ge_u32 s54, 4")
a.e("s_cbranch_scc1 L_COMPUTE")

a.c("LOADER")
a.e("s_lshl_b32 s60, s61, 1")
a.e("s_add_u32 s60, s60, s57")
a.e("v_lshrrev_b32 v20, 3, v1")
a.e("v_lshrrev_b32 v21, 4, v1")
a.e("v_and_b32 v22, 7, v1")
a.e("v_xor_b32 v24, v22, v21")
a.e("v_xor_b32 v23, 4, v24")
a.e("s_lshl_b32 s58, s50, 7")
a.e("s_lshl_b32 s59, s55, 5")
a.e("s_add_u32 s58, s58, s59")
a.e("s_lshl_b32 s58, s58, 10")
a.e("v_lshlrev_b32 v20, 10, v20")
a.e("v_add_u32 v25, s58, v20")
a.e("v_lshl_add_u32 v2, v24, 4, v25")
a.e("v_lshl_add_u32 v3, v23, 4, v25")
a.e("v_add_u32 v3, 8192, v3")
a.e("v_add_u32 v4, 16384, v2")
a.e("v_add_u32 v5, 16384, v3")
a.e("s_mul_i32 s58, s55, 44032")
a.e("s_lshl_b32 s59, s52, 6")
a.e("s_add_u32 s58, s58, s59")
a.e("s_movk_i32 s59, 2752")
for i in range(3):
    a.e(f"v_add_u32 v26, {64*i}, v1")
    a.e("v_mul_u32_u24 v27, 171, v26")
    a.e("v_lshrrev_b32 v27, 11, v27")
    a.e("v_mul_u32_u24 v28, 12, v27")
    a.e("v_sub_u32 v28, v26, v28")
    a.e("v_lshrrev_b32 v29, 2, v27")
    a.e("v_and_b32 v29, 2, v29")
    a.e("v_xor_b32 v28, v28, v29")
    a.e("v_mul_u32_u24 v27, s59, v27")
    a.e("v_lshl_add_u32 v27, v28, 4, v27")
    a.e(f"v_add_u32 v{6+i}, s58, v27")
a.e("s_lshl_b32 s62, s55, 12")
a.e("s_mul_i32 s63, s55, 3072")
a.e("s_add_u32 s63, s63, 16384")
a.e("s_waitcnt lgkmcnt(0)")
srd(a, 8, 36, 2048 * 1024)
srd(a, 12, 38, 512 * 2752)
srd(a, 16, 40, 512 * 2752)

def issue(st):
    buf = (st % 4) * BUF
    a.e(f"s_add_u32 s59, s60, {st}")
    a.e("s_and_b32 s59, s59, 7")
    a.e("s_lshl_b32 s58, s59, 7")
    a.e("s_mul_i32 s59, s59, 176128")
    for t in range(4):
        a.e(f"s_add_u32 m0, s62, {buf + t*1024}")
        a.e("s_nop 0")
        a.vm_op(f"buffer_load_dwordx4 v{2+t}, s[8:11], s58 offen lds", ("st", st))
    for gu in range(2):
        for i in range(3):
            a.e(f"s_add_u32 m0, s63, {buf + gu*12288 + i*1024}")
            a.e("s_nop 0")
            a.vm_op(f"buffer_load_dwordx4 v{6+i}, s[{12+4*gu}:{15+4*gu}], s59 offen lds", ("st", st))
def issueW(qp):
    a.e(f"s_add_u32 s58, s56, {qp}")
    a.e("s_and_b32 s58, s58, 3")
    a.e("s_mul_i32 s58, s58, 327680")
    a.e("s_add_u32 s58, s58, s65")
    for i in range(10):
        a.e(f"s_add_u32 m0, s64, {qp*BUF + i*1024}")
        if i: a.e("s_add_u32 s58, s58, 8192")
        else: a.e("s_nop 0")
        a.vm_op(f"buffer_load_dwordx4 v{9 + (i & 1)}, s[24:27], s58 offen lds", ("st", 8 + qp))

issue(0)
if 'codepf' in OPT:
    a.e("s_getpc_b64 s[58:59]")
    a.e("s_and_b32 s58, s58, 0xffffff00")
    a.e("s_lshl_b32 s61, s55, 13")
    a.e("v_lshlrev_b32 v26, 7, v1")
    a.e("v_add_u32 v26, s61, v26")
    a.e("v_min_u32 v26, CODE_END_OFF, v26")
    a.vm_op("global_load_dword v27, v26, s[58:59]", ("st", 1))
issue(1)
a.e("v_and_b32 v21, 1, v21")
a.e("v_lshlrev_b32 v21, 1, v21")
a.e("v_xor_b32 v22, v22, v21")
a.e("s_lshl_b32 s58, s57, 7")
a.e("v_add_u32 v20, s58, v20")
a.e("v_lshl_add_u32 v9, v22, 4, v20")
a.e("v_xor_b32 v22, 4, v22")
a.e("v_lshl_add_u32 v10, v22, 4, v20")
srd(a, 24, 42, 1376 * 1024)
srd(a, 20, 48, H_BYTES)
srd(a, 28, 44, 2048 * 1024)
srd(a, 32, 46, 256)
srd(a, 4, 48, H_BYTES + 4096)
a.e("s_mul_i32 s64, s55, 10240")
a.e("s_mul_i32 s65, s55, 81920")
def optval(name, d):
    v = [o[len(name)+1:] for o in OPT if o.startswith(name + '=')]
    return int(v[0]) if v else d
WPF = optval('wpf', 0); PF0 = optval('pf0', 1); NPF = optval('npf', 6)
a.e("s_lshr_b32 s58, s2, 3")
a.e("s_lshl_b32 s58, s58, 2")
a.e("s_add_u32 s58, s58, s55")
a.e("s_mul_i32 s58, s58, 11008")
a.e("s_add_u32 s96, s42, s58")
a.e("s_addc_u32 s97, s43, 0")
RW = 96
XR = 216
def issueR(qp):
    a.e(f"s_add_u32 s58, s56, {qp}")
    a.e("s_and_b32 s58, s58, 3")
    a.e("s_mul_i32 s58, s58, 327680")
    a.e("s_add_u32 s58, s58, s65")
    for i in range(10):
        r = RW + (qp - 1) * 40 + 4 * i
        a.vm_op(f"buffer_load_dwordx4 v[{r}:{r+3}], v{9 + (i & 1)}, s[24:27], s58 offen", ("r", qp))
        if i < 9: a.e("s_add_u32 s58, s58, 8192")
for s in range(0, 7):
    tags = [("st", s)]
    a.wait(vm_tags=tags); a.e("s_barrier")
    if s == 0: a.stamp(1)
    if WPF and PF0 <= s < PF0 + NPF:
        per = (WPF + NPF - 1) // NPF
        k0 = (s - PF0) * per
        for k in range(k0, min(k0 + per, WPF)):
            a.e(f"s_load_dword s95, s[96:97], {k*(11008//WPF)}")
    if s + 2 < 8: issue(s + 2)
def issueX():
    a.e("s_add_u32 s58, s55, 40")
    a.e("s_lshl_b32 s58, s58, 15")
    for i in range(4):
        a.vm_op(f"buffer_load_dwordx4 v[{XR+4*i}:{XR+4*i+3}], v{9 + (i & 1)}, s[24:27], s58 offen", "xr")
        if i < 3: a.e("s_add_u32 s58, s58, 8192")
if 'r3first' in OPT:
    issueR(3); issueX()
    a.wait(vm_tags=[("st", 7)])
    a.e("s_barrier")
    issueW(0)
    a.e("s_barrier")
    issueW(1); issueW(2)
else:
    a.e("s_lshl_b32 s58, s50, 4")
    a.e("s_lshr_b32 s59, s56, 1")
    a.e("s_lshl_b32 s59, s59, 4")
    a.e("v_mov_b32 v17, s58")
    a.e("v_mov_b32 v18, s59")
    a.e("v_cmp_gt_u32 vcc, 32, v1")
    a.e("s_nop 1")
    a.e("v_cndmask_b32 v17, v18, v17, vcc")
    a.vm_op("buffer_load_dword v20, v17, s[32:35], 0 offen sc1", "chk")
    issueX(); issueW(0)
    a.wait(vm_tags=[("st", 7)])
    a.e("s_barrier")
    issueW(1)
    a.wait(vm_tags=["chk"])
    a.e("v_cmp_eq_u32 vcc, 0, v20")
    a.e("s_cbranch_vccz L_POLLC_DONE")
    a.label("L_POLLC")
    a.e("buffer_load_dword v20, v17, s[32:35], 0 offen sc1")
    a.e("s_add_u32 s3, s3, 1")
    a.e(f"s_cmp_gt_u32 s3, {SPIN}")
    a.e("s_cbranch_scc1 L_POLLC_DONE")
    a.e("s_waitcnt vmcnt(0)")
    a.e("v_cmp_eq_u32 vcc, 0, v20")
    a.e("s_cbranch_vccnz L_POLLC")
    a.label("L_POLLC_DONE")
    a.e("s_barrier")
    issueW(2); issueR(3)
a.e("v_lshlrev_b32 v11, 4, v1")
a.e("v_add_u32 v11, s64, v11")
a.e(f"v_add_u32 v12, {2*BUF}, v11")
a.stamp(4)
a.wait_all_vm()
a.stamp(5)
a.e("s_barrier")
a.stamp(6)
for qp in range(3, 4):
    for i in range(10):
        r = RW + (qp - 1) * 40 + 4 * i
        a.e(f"ds_write_b128 v{11 if qp < 2 else 12}, v[{r}:{r+3}] offset:{(qp & 1)*BUF + i*1024}")
a.e("s_waitcnt lgkmcnt(0)")
a.e("s_branch L_G2")

a.reset()
a.e(".p2align 6")
a.label("L_COMPUTE")
a.e("s_and_b32 s62, s55, 1")
a.e("s_lshr_b32 s63, s55, 1")
a.e("v_and_b32 v20, 15, v1")
a.e("v_lshrrev_b32 v21, 4, v1")
a.e("v_bfe_u32 v22, v20, 1, 3")
a.e("v_xor_b32 v22, v22, v21")
a.e("v_lshlrev_b32 v22, 4, v22")
a.e("v_lshl_add_u32 v22, v20, 7, v22")
a.e("s_lshl_b32 s58, s62, 13")
a.e("v_add_u32 v2, s58, v22")
a.e("v_xor_b32 v3, 64, v2")
a.e(f"v_add_u32 v4, {2*BUF}, v2")
a.e(f"v_add_u32 v5, {2*BUF}, v3")
a.e("v_bfe_u32 v22, v1, 2, 2")
a.e("v_lshl_add_u32 v22, v21, 3, v22")
a.e("v_mul_u32_u24 v22, 192, v22")
a.e("v_and_b32 v23, 3, v1")
a.e("v_lshl_add_u32 v22, v23, 3, v22")
a.e("v_add_u32 v22, 16384, v22")
a.e("v_and_b32 v23, 1, v21")
a.e("s_mul_i32 s64, s63, s53")
for ft in range(3):
    a.e(f"s_add_u32 s58, s64, {ft}")
    a.e("v_xor_b32 v24, s58, v23")
    a.e(f"v_lshl_add_u32 v{6+ft}, v24, 5, v22")
    a.e(f"v_add_u32 v{9+ft}, {2*BUF}, v{6+ft}")
a.e("v_lshlrev_b32 v24, 10, v23")
a.e("v_lshrrev_b32 v25, 1, v21")
a.e("v_lshl_add_u32 v24, v25, 8, v24")
a.e("v_lshl_add_u32 v24, v20, 4, v24")
a.e("s_lshl_b32 s58, s50, 3")
a.e("s_lshl_b32 s59, s62, 2")
a.e("s_add_u32 s58, s58, s59")
a.e("s_lshl_b32 s58, s58, 10")
a.e("v_add_u32 v12, s58, v24")
a.e(f"v_mov_b32 v14, 0x{f2u(C1):08x}")
a.e(f"v_mov_b32 v15, 0x{f2u(C1):08x}")
a.e(f"s_mov_b32 s90, 0x{f2u(C2):08x}")
a.e(f"s_mov_b32 s91, 0x{f2u(C2):08x}")
a.e("s_mov_b32 s92, 1.0")
a.e("s_mov_b32 s93, 1.0")
a.e("s_lshl_b32 s60, s52, 1")
a.e("s_add_u32 s60, s60, s64")
for ft in range(3):
    a.e(f"s_add_u32 s58, s60, {ft}")
    a.e("s_lshr_b32 s59, s58, 1")
    a.e("s_lshl_b32 s59, s59, 17")
    a.e("s_and_b32 s58, s58, 1")
    a.e("s_lshl_b32 s58, s58, 9")
    a.e(f"s_add_u32 s{94+ft}, s58, s59")
a.e("s_lshl_b32 s61, s50, 1")
a.e("s_add_u32 s61, s61, s62")
a.e("s_lshl_b32 s61, s61, 7")
a.e("s_lshl_b32 s58, s51, 1")
a.e("s_add_u32 s58, s58, s63")
a.e("s_lshl_b32 s58, s58, 2")
a.e("s_add_u32 s61, s61, s58")
a.e(f"s_add_u32 s61, s61, {H_BYTES}")
a.e("v_mov_b32 v13, 0")
a.e("s_waitcnt lgkmcnt(0)")
srd(a, 20, 48, H_BYTES)
srd(a, 28, 44, 2048 * 1024)
srd(a, 32, 46, 256)
srd(a, 4, 48, H_BYTES + 4096)
if 'mallpf' in OPT:
    a.e("s_cmp_lg_u32 s54, 5")
    a.e("s_cbranch_scc1 L_NOMPF")
    srd(a, 24, 42, 1376 * 1024)
    a.e("s_mul_i32 s58, s2, 5504")
    a.e("v_min_u32 v24, 42, v1")
    a.e("v_lshlrev_b32 v24, 7, v24")
    a.e("buffer_load_dword v200, v24, s[24:27], s58 offen")
    a.label("L_NOMPF")
a.e("s_lshl_b32 s97, s51, 3")
a.e("s_add_u32 s97, s97, s54")
a.e("s_cmp_lg_u32 s97, 4")
a.e("s_cbranch_scc1 L_NOCLR")
a.e("v_lshlrev_b32 v24, 2, v1")
a.e("buffer_store_dword v13, v24, s[4:7], s61 offen sc1")
a.label("L_NOCLR")
if 'noprio' not in OPT: a.e("s_setprio 3")

def WF(n, j): return 16 + 24 * (n & 1) + 4 * j
def XF(n, mi): return 64 + 16 * (n & 1) + 4 * mi
def ACC(j, mi): return 96 + 16 * j + 4 * mi
def read_x(n, mis):
    st, s2 = n >> 1, n & 1
    b = st % 4
    reg = (2 if b < 2 else 4) + s2
    for mi in mis:
        a.lds_op(f"ds_read_b128 v[{XF(n,mi)}:{XF(n,mi)+3}], v{reg} offset:{(b & 1) * BUF + mi * 2048}", ("x", n, mi))
def read_w(n, j):
    st, s2 = n >> 1, n & 1
    b = st % 4
    ft, gu = j >> 1, j & 1
    reg = (6 if b < 2 else 9) + ft
    for h in range(2):
        off = (b & 1) * BUF + gu * 12288 + s2 * 6144 + h * 768
        a.lds_op(f"ds_read_b64_tr_b16 v[{WF(n,j)+2*h}:{WF(n,j)+2*h+1}], v{reg} offset:{off}", ("w", n, j))

a.e("s_barrier")
a.stamp(1)
read_w(0, 0)
read_x(0, range(4))
CLRB = 3
def cnt_add():
    a.e("s_cmp_lg_u32 s97, 4")
    a.e("s_cbranch_scc1 L_NOCNT")
    a.e("v_mov_b32 v192, 1")
    a.e("s_lshl_b32 s58, s50, 4")
    a.e("s_waitcnt vmcnt(0)")
    a.e("s_mov_b64 exec, 1")
    a.e("buffer_store_dword v192, v13, s[32:35], s58 offen sc1")
    a.e("s_mov_b64 exec, -1")
    a.label("L_NOCNT")
for j in range(1, 6): read_w(0, j)
NS = 16
for n in range(NS):
    st, s2 = n >> 1, n & 1
    nxt = n + 1 < NS
    if s2 == 1:
        a.e("s_barrier")
        if st in (1, 3, 5): a.stamp(2 + (st >> 1))
        if st == 0: cnt_add()

    for j in range(6):
        for mi in range(4):
            if mi == 0 or j == 0:
                a.wait(lds_tags=[("w", n, j), ("x", n, mi)])
            cin = "0" if n == 0 else f"v[{ACC(j,mi)}:{ACC(j,mi)+3}]"
            a.e(f"v_mfma_f32_16x16x32_bf16 v[{ACC(j,mi)}:{ACC(j,mi)+3}], v[{WF(n,j)}:{WF(n,j)+3}], v[{XF(n,mi)}:{XF(n,mi)+3}], {cin}")
            if nxt:
                if j == 0 and mi == 0: read_w(n + 1, 0)
                if j == 0 and mi == 2: read_x(n + 1, [0, 1])
                if j == 1 and mi == 0: read_x(n + 1, [2, 3])
                if j == 1 and mi == 2: read_w(n + 1, 1)
                if j >= 2 and mi == 0: read_w(n + 1, j)
a.e("s_nop 7")
a.stamp(5)
T = 16
for ft in range(3):
    if ft == 2:
        a.e("s_cmp_lt_u32 s53, 3")
        a.e("s_cbranch_scc1 L_EPI_DONE")
    for pr in range(2):
        G, U = ACC(2 * ft, 2 * pr), ACC(2 * ft + 1, 2 * pr)
        t0 = T + 16 * pr
        p0 = t0 + 8
        ps = range(0, 8, 2)
        if 'nopk' not in OPT:
            for r in ps: a.e(f"v_pk_mul_f32 v[{t0+r}:{t0+r+1}], v[{G+r}:{G+r+1}], v[{G+r}:{G+r+1}]")
            for r in ps: a.e(f"v_pk_fma_f32 v[{t0+r}:{t0+r+1}], v[{t0+r}:{t0+r+1}], s[90:91], v[14:15]")
            for r in ps: a.e(f"v_pk_mul_f32 v[{t0+r}:{t0+r+1}], v[{t0+r}:{t0+r+1}], v[{G+r}:{G+r+1}]")
            for r in range(8): a.e(f"v_exp_f32 v{t0+r}, v{t0+r}")
            for r in ps: a.e(f"v_pk_mul_f32 v[{p0+r}:{p0+r+1}], v[{G+r}:{G+r+1}], v[{U+r}:{U+r+1}]")
            for r in ps: a.e(f"v_pk_add_f32 v[{t0+r}:{t0+r+1}], v[{t0+r}:{t0+r+1}], s[92:93]")
            for r in range(8): a.e(f"v_rcp_f32 v{t0+r}, v{t0+r}")
            a.e("s_nop 0")
            for r in ps: a.e(f"v_pk_mul_f32 v[{t0+r}:{t0+r+1}], v[{t0+r}:{t0+r+1}], v[{p0+r}:{p0+r+1}]")
        else:
            rs = range(8)
            for r in rs: a.e(f"v_mul_f32 v{t0+r}, v{G+r}, v{G+r}")
            for r in rs: a.e(f"v_fmamk_f32 v{t0+r}, v{t0+r}, 0x{f2u(C2):08x}, v14")
            for r in rs: a.e(f"v_mul_f32 v{t0+r}, v{t0+r}, v{G+r}")
            for r in rs: a.e(f"v_exp_f32 v{t0+r}, v{t0+r}")
            for r in rs: a.e(f"v_mul_f32 v{p0+r}, v{G+r}, v{U+r}")
            for r in rs: a.e(f"v_add_f32 v{t0+r}, 1.0, v{t0+r}")
            for r in rs: a.e(f"v_rcp_f32 v{t0+r}, v{t0+r}")
            a.e("s_nop 0")
            for r in rs: a.e(f"v_mul_f32 v{t0+r}, v{t0+r}, v{p0+r}")
        O = 64 + 8 * ft + 4 * pr
        for i in range(4): a.e(f"v_cvt_pk_bf16_f32 v{O+i}, v{t0+2*i}, v{t0+2*i+1}")
        a.e("s_nop 1")
        a.e(f"v_permlane16_swap_b32 v{O}, v{O+2}")
        a.e(f"v_permlane16_swap_b32 v{O+1}, v{O+3}")
        a.e(f"buffer_store_dwordx4 v[{O}:{O+3}], v12, s[20:23], s{94+ft} offen offset:{pr*2048} sc1")
a.label("L_EPI_DONE")
a.stamp(6)
a.e("s_waitcnt vmcnt(0)")
a.e("v_mov_b32 v88, 1")
a.e("s_mov_b64 exec, 1")
a.e("buffer_store_dword v88, v13, s[4:7], s61 offen sc1")
a.e("s_mov_b64 exec, -1")
a.e("s_setprio 0")
a.e("s_barrier")

a.reset()
a.label("L_G2")
a.e("s_lshr_b32 s63, s54, 2")
a.e("v_lshrrev_b32 v21, 4, v1")
a.e("v_and_b32 v23, 1, v21")
a.e("v_bfe_u32 v22, v1, 2, 2")
a.e("v_lshl_add_u32 v22, v21, 3, v22")
a.e("v_lshlrev_b32 v22, 7, v22")
a.e("v_and_b32 v24, 1, v1")
a.e("v_lshl_add_u32 v22, v24, 3, v22")
a.e("v_bfe_u32 v24, v1, 1, 1")
a.e("v_lshl_add_u32 v22, v24, 4, v22")
a.e(f"s_mul_i32 s58, s55, {BUF}")
a.e("v_add_u32 v22, s58, v22")
a.e("v_bfe_u32 v24, v1, 3, 1")
a.e("v_lshl_add_u32 v24, v23, 1, v24")
a.e("v_lshlrev_b32 v24, 1, v24")
for j in range(4):
    a.e(f"v_xor_b32 v25, {2*j}, v24")
    a.e(f"v_lshl_add_u32 v{2+j}, v25, 4, v22")
a.e("v_lshlrev_b32 v14, 4, v1")
a.e("s_lshl_b32 s60, s57, 12")
a.e("s_add_u32 s59, s58, s60")
a.e("v_add_u32 v7, s59, v14")
a.e("s_lshl_b32 s59, s63, 13")
a.e("s_add_u32 s58, s58, s59")
a.e("v_add_u32 v15, s58, v14")
a.e("s_lshl_b32 s58, s56, 12")
a.e("s_lshl_b32 s59, s63, 11")
a.e("s_add_u32 s58, s58, s59")
a.e("v_add_u32 v6, s58, v14")
a.e("s_add_u32 s64, s55, s56")
a.e("s_and_b32 s64, s64, 3")
a.e("s_mul_i32 s64, s64, 10")
a.e("s_mov_b32 s65, s57")
a.e("s_mov_b32 s62, s57")
a.e("v_and_b32 v24, 31, v1")
a.e("v_lshlrev_b32 v13, 2, v24")
a.e("v_lshrrev_b32 v24, 1, v24")
a.e("v_mul_u32_u24 v25, 43, v24")
a.e("v_add_u32 v26, 43, v25")
a.e("v_lshrrev_b32 v25, 4, v25")
a.e("v_lshrrev_b32 v26, 4, v26")
a.e("s_add_u32 s58, s64, 10")
a.e("v_cmp_gt_u32 s[90:91], s58, v25")
a.e("v_cmp_lt_u32 s[92:93], s64, v26")
a.e("s_and_b64 s[90:91], s[90:91], s[92:93]")
a.e("v_cmp_eq_u32 s[92:93], 15, v24")
a.e("s_or_b64 s[90:91], s[90:91], s[92:93]")
if 'allflags' in OPT: a.e("s_mov_b64 s[90:91], -1")
a.e("s_lshl_b32 s61, s56, 7")
a.e(f"s_add_u32 s61, s61, {H_BYTES}")
def HB(i, mi): return 96 + i * 8 + 4 * mi
def AFR(i, j): return 16 + (i & 1) * 16 + 4 * j
def ACC2(j, mi): return 48 + 16 * mi + 4 * j
def h_soff(i):
    if i < 10:
        a.e("s_add_u32 s58, s64, s65")
        a.e(f"s_lshl_b32 s{70+i if not DIAG else 8+i}, s58, 17")
        a.e("s_add_u32 s65, s65, 1")
        a.e("s_cmp_eq_u32 s65, 10")
        a.e("s_cselect_b32 s65, 0, s65")
    else:
        a.e("s_add_u32 s58, s55, 40")
        a.e(f"s_lshl_b32 s{70+i if not DIAG else 8+i}, s58, 17")
def HS(i): return f"s{70+i if not DIAG else 8+i}"
def h_loads(i, track=True):
    for mi in range(2):
        s_ = f"buffer_load_dwordx4 v[{HB(i,mi)}:{HB(i,mi)+3}], v6, s[20:23], {HS(i)} offen offset:{mi*1024} sc1"
        if track: a.vm_op(s_, ("h", i))
        else: a.e(s_)
def a_addr(i):
    if i < 10:
        a.e("s_lshl_b32 s59, s62, 12")
        a.e("s_add_u32 s62, s62, 1")
        a.e("s_cmp_eq_u32 s62, 10")
        a.e("s_cselect_b32 s62, 0, s62")
        sreg = "s59"
    else: sreg = "s60"
    for j in range(4): a.e(f"v_add_u32 v{8+j}, {sreg}, v{2+j}")
def a_read(i, j):
    for hh in range(2):
        a.lds_op(f"ds_read_b64_tr_b16 v[{AFR(i,j)+2*hh}:{AFR(i,j)+2*hh+1}], v{8+j} offset:{hh*512}", ("a", i, j))
for i in range(11): h_soff(i)
a_addr(0)
a.e("s_barrier")
a.stamp(7)
for j in range(4): a_read(0, j)
a.wait_all_lds()
a.e("s_barrier")
a.e("s_cmp_ge_u32 s54, 4")
a.e("s_cbranch_scc1 L_NOXW")
for q in range(4):
    a.e(f"ds_write_b128 v7, v[{XR+4*q}:{XR+4*q+3}] offset:{q*1024}")
a.e("s_waitcnt lgkmcnt(0)")
a.label("L_NOXW")
a.e("s_barrier")
a.label("L_POLL")
a.e("buffer_load_dword v80, v13, s[4:7], s61 offen sc1")
a.e("s_add_u32 s3, s3, 1")
a.e(f"s_cmp_gt_u32 s3, {SPIN}")
a.e("s_cbranch_scc1 L_POLLDONE")
a.e("s_waitcnt vmcnt(0)")
a.e("v_cmp_ne_u32 vcc, 1, v80")
a.e("s_and_b64 vcc, vcc, s[90:91]")
a.e("s_cbranch_vccnz L_POLL")
a.label("L_POLLDONE")
a.stamp(8)
for i in range(11): h_loads(i)
def check(i):
    b = HB(i, 0)
    a.e(f"v_max3_u32 v80, v{b}, v{b+1}, v{b+2}")
    a.e(f"v_max3_u32 v81, v{b+3}, v{b+4}, v{b+5}")
    a.e(f"v_max3_u32 v80, v80, v{b+6}, v{b+7}")
    a.e("v_max_u32 v80, v80, v81")
    a.e("v_cmp_eq_u32 vcc, -1, v80")
for i in range(11):
    if i + 1 < 11: a_addr(i + 1)
    a.wait(vm_tags=[("h", i)])
    if i == 0: a.stamp(9)
    for j in range(4):
        a.wait(lds_tags=[("a", i, j)])
        for mi in range(2):
            cin = "0" if i == 0 else f"v[{ACC2(j,mi)}:{ACC2(j,mi)+3}]"
            a.e(f"v_mfma_f32_16x16x32_bf16 v[{ACC2(j,mi)}:{ACC2(j,mi)+3}], v[{AFR(i,j)}:{AFR(i,j)+3}], v[{HB(i,mi)}:{HB(i,mi)+3}], {cin}")
            if mi == 0 and i + 1 < 11: a_read(i + 1, j)
a.stamp(10)
a.e("s_barrier")
a.e("s_nop 7")
for mi in range(2):
    for j in range(4):
        a.e(f"ds_write_b128 v15, v[{ACC2(j,mi)}:{ACC2(j,mi)+3}] offset:{mi*4096 + j*1024}")
a.e("s_lshl_b32 s58, s55, 12")
a.e("s_lshl_b32 s59, s63, 11")
a.e("s_add_u32 s58, s58, s59")
a.e("v_add_u32 v8, s58, v14")
a.e(f"v_add_u32 v9, {2*BUF}, v8")
a.e("s_lshl_b32 s58, s56, 6")
a.e("s_lshl_b32 s59, s55, 4")
a.e("s_add_u32 s58, s58, s59")
a.e("s_lshl_b32 s58, s58, 10")
a.e("s_lshl_b32 s59, s57, 7")
a.e("s_add_u32 s58, s58, s59")
a.e("s_lshl_b32 s59, s63, 6")
a.e("s_add_u32 s58, s58, s59")
a.e("v_and_b32 v10, 15, v1")
a.e("v_lshlrev_b32 v10, 10, v10")
a.e("v_bfe_u32 v11, v1, 4, 1")
a.e("v_lshl_add_u32 v10, v11, 5, v10")
a.e("v_lshrrev_b32 v11, 5, v1")
a.e("v_lshl_add_u32 v10, v11, 4, v10")
a.wait_all_lds()
a.e("s_barrier")
for src in range(4):
    for jj in range(2):
        r = 96 + 8 * src + 4 * jj
        a.e(f"ds_read_b128 v[{r}:{r+3}], v{8 + (src >> 1)} offset:{(src & 1)*BUF + jj*1024}")
a.e("s_waitcnt lgkmcnt(4)")
for k in range(0, 8, 2): a.e(f"v_pk_add_f32 v[{96+k}:{97+k}], v[{96+k}:{97+k}], v[{104+k}:{105+k}]")
a.e("s_waitcnt lgkmcnt(0)")
for k in range(0, 8, 2): a.e(f"v_pk_add_f32 v[{112+k}:{113+k}], v[{112+k}:{113+k}], v[{120+k}:{121+k}]")
for k in range(0, 8, 2): a.e(f"v_pk_add_f32 v[{96+k}:{97+k}], v[{96+k}:{97+k}], v[{112+k}:{113+k}]")
for k in range(4): a.e(f"v_cvt_pk_bf16_f32 v{16+k}, v{96+2*k}, v{96+2*k+1}")
a.e("s_nop 1")
a.e("v_permlane16_swap_b32 v16, v18")
a.e("v_permlane16_swap_b32 v17, v19")
OUTF = ' sc1' if 'outsc1' in OPT else ' nt' if 'outnt' in OPT else ''
if 'noout' not in OPT: a.e(f"buffer_store_dwordx4 v[16:19], v10, s[28:31], s58 offen{OUTF}")
a.dump_stamps(11)
a.label("L_END")
a.e("s_endpgm")
a.label("L_CODE_END")

HDR = open("standalone__glu_gated_geglu__prompt.s.ref").read().split("; Override")[0]
out = HDR + "; @launch grid=(256,1,1) block=(512,1,1) lds=163840\n"
out += f'.amdgcn_target "amdgcn-amd-amdhsa--gfx950"\n.text\n.globl {KN}\n.p2align 8\n.type {KN},@function\n'
out += f".set CODE_END_OFF, L_CODE_END - {KN} - 1024\n"
out += a.text() + f"""
.section .rodata,"a"
.p2align 6
.amdhsa_kernel {KN}
  .amdhsa_next_free_vgpr 256
  .amdhsa_next_free_sgpr 102
  .amdhsa_accum_offset 256
  .amdhsa_group_segment_fixed_size 0
  .amdhsa_kernarg_size 56
  .amdhsa_user_sgpr_count 2
  .amdhsa_user_sgpr_kernarg_segment_ptr 1
  .amdhsa_system_sgpr_workgroup_id_x 1
.end_amdhsa_kernel
"""
open(sys.argv[1], "w").write(out)
```

```python
import sys, struct
OPT = set(sys.argv[2:])
DIAG = 'diag' in OPT
KN = "standalone__glu_gated_geglu__prompt_kernel"
def f2u(x): return struct.unpack("<I", struct.pack("<f", x))[0]

class Asm:
    def __init__(self):
        self.lines = []; self.lds = []; self.vm = []; self.nst = 0
    def e(self, s): self.lines.append("    " + s)
    def label(self, s): self.lines.append(s + ":")
    def c(self, s): self.lines.append("    ; " + s)
    def reset(self): self.lds = []; self.vm = []
    def lds_op(self, s, tag=None): self.e(s); self.lds.append(tag)
    def vm_op(self, s, tag=None): self.e(s); self.vm.append(tag)
    def _need(self, q, tags):
        last = -1
        for i, t in enumerate(q):
            if t in tags: last = i
        return last
    def wait(self, lds_tags=(), vm_tags=()):
        parts = []
        if vm_tags:
            last = self._need(self.vm, vm_tags)
            if last >= 0:
                n = len(self.vm) - 1 - last
                assert n <= 63, n
                parts.append(f"vmcnt({n})"); self.vm = self.vm[last + 1:]
        if lds_tags:
            last = self._need(self.lds, lds_tags)
            if last >= 0:
                n = min(len(self.lds) - 1 - last, 15)
                parts.append(f"lgkmcnt({n})")
                self.lds = self.lds[len(self.lds) - n:] if n else []
        if parts: self.e("s_waitcnt " + " ".join(parts))
    def wait_all_lds(self): self.e("s_waitcnt lgkmcnt(0)"); self.lds = []
    def wait_all_vm(self): self.e("s_waitcnt vmcnt(0)"); self.vm = []
    def text(self): return "\n".join(self.lines)
    def stamp(self, k):
        if not DIAG: return
        op = "s_memtime" if 'clk' in OPT else "s_memrealtime"
        self.e(f"{op} s[{68+2*k}:{69+2*k}]")
        self.e("s_waitcnt lgkmcnt(0)"); self.lds = []
    def dump_stamps(self, n):
        if not DIAG: return
        self.e("s_waitcnt vmcnt(0)")
        self.e("s_memrealtime s[66:67]")
        self.e("s_waitcnt lgkmcnt(0)")
        self.e("s_mov_b32 s22, 0x10000000")
        self.e("s_lshl_b32 s64, s2, 4"); self.e("s_add_u32 s64, s64, s54"); self.e("s_lshl_b32 s64, s64, 7")
        self.e("s_add_u32 s64, s64, 0x4000000")
        self.e("v_mov_b32 v1, 0")
        for k in range(n):
            self.e(f"v_mov_b32 v2, s{68+2*k}")
            self.e(f"buffer_store_dword v2, v1, s[20:23], s64 offen offset:{4*k}")
        self.e("v_mov_b32 v3, s66")
        self.e(f"buffer_store_dword v3, v1, s[20:23], s64 offen offset:{4*n}")
        self.e("v_mov_b32 v3, s3")
        self.e(f"buffer_store_dword v3, v1, s[20:23], s64 offen offset:120")

H_BYTES = 43 * 128 * 1024
C1 = -2.0 * 1.4426950408889634 * 0.7978845608028654
C2 = C1 * 0.044715
BUF = 40960
SPIN = 0x40000
HOFF = [int(o[5:]) for o in OPT if o.startswith('hoff=')]
HOFF = (HOFF[0] << 20) if HOFF else 0
def srd(a, d, lo, nbytes):
    if lo == 48 and HOFF:
        a.e(f"s_add_u32 s{d}, s{lo}, {HOFF}")
        a.e(f"s_addc_u32 s{d+1}, s{lo+1}, 0")
        a.e(f"s_and_b32 s{d+1}, s{d+1}, 0xffff")
        a.e(f"s_mov_b32 s{d+2}, {nbytes}")
        a.e(f"s_mov_b32 s{d+3}, 0x20000")
        return
    a.e(f"s_mov_b32 s{d}, s{lo}")
    a.e(f"s_and_b32 s{d+1}, s{lo+1}, 0xffff")
    a.e(f"s_mov_b32 s{d+2}, {nbytes}")
    a.e(f"s_mov_b32 s{d+3}, 0x20000")

a = Asm()
a.label(KN)
a.e("s_cmp_ge_u32 s2, 256")
a.e("s_cbranch_scc1 L_END")
a.e("s_load_dwordx8 s[36:43], s[0:1], 0")
a.e("s_load_dwordx4 s[44:47], s[0:1], 32")
a.e("s_load_dwordx2 s[48:49], s[0:1], 48")
if DIAG:
    a.e("s_memrealtime s[68:69]")
    for k in range(1, 15): a.e(f"s_mov_b32 s{68+2*k}, 0")
a.e("v_and_b32 v1, 63, v0")
a.e("v_lshrrev_b32 v2, 6, v0")
a.e("s_and_b32 s58, s2, 7")
a.e("v_readfirstlane_b32 s54, v2")
a.e("s_lshr_b32 s59, s2, 3")
a.e("s_and_b32 s50, s58, 1")
a.e("s_lshl_b32 s50, s50, 3")
a.e("s_and_b32 s57, s59, 7")
a.e("s_add_u32 s50, s50, s57")
a.e("s_lshr_b32 s51, s58, 1")
a.e("s_lshl_b32 s51, s51, 2")
a.e("s_lshr_b32 s61, s59, 3")
a.e("s_add_u32 s51, s51, s61")
a.e("s_mul_i32 s52, s51, 43")
a.e("s_add_u32 s53, s52, 43")
a.e("s_lshr_b32 s52, s52, 4")
a.e("s_lshr_b32 s53, s53, 4")
a.e("s_sub_u32 s53, s53, s52")
a.e("s_lshl_b32 s56, s58, 2")
a.e("s_add_u32 s56, s56, s61")
a.e("s_and_b32 s55, s54, 3")
a.e("s_mov_b32 s100, s57")
if 'nt2shift' in OPT:
    a.e("s_add_u32 s57, s57, 2")
    a.e("s_and_b32 s57, s57, 7")
a.e("s_mov_b32 s98, s56")
a.e("s_mov_b32 s3, 0")
a.e("s_cmp_ge_u32 s54, 4")
a.e("s_cbranch_scc1 L_COMPUTE")

a.c("LOADER")
a.e("s_lshl_b32 s60, s61, 1")
a.e("s_add_u32 s60, s60, s100")
a.e("v_lshrrev_b32 v20, 3, v1")
a.e("v_lshrrev_b32 v21, 4, v1")
a.e("v_and_b32 v22, 7, v1")
a.e("v_xor_b32 v24, v22, v21")
a.e("v_xor_b32 v23, 4, v24")
a.e("s_lshl_b32 s58, s50, 7")
a.e("s_lshl_b32 s59, s55, 5")
a.e("s_add_u32 s58, s58, s59")
a.e("s_lshl_b32 s58, s58, 10")
a.e("v_lshlrev_b32 v20, 10, v20")
a.e("v_add_u32 v25, s58, v20")
a.e("v_lshl_add_u32 v2, v24, 4, v25")
a.e("v_lshl_add_u32 v3, v23, 4, v25")
a.e("v_add_u32 v3, 8192, v3")
a.e("v_add_u32 v4, 16384, v2")
a.e("v_add_u32 v5, 16384, v3")
a.e("s_mul_i32 s58, s55, 44032")
a.e("s_lshl_b32 s59, s52, 6")
a.e("s_add_u32 s58, s58, s59")
a.e("s_movk_i32 s59, 2752")
for i in range(3):
    a.e(f"v_add_u32 v26, {64*i}, v1")
    a.e("v_mul_u32_u24 v27, 171, v26")
    a.e("v_lshrrev_b32 v27, 11, v27")
    a.e("v_mul_u32_u24 v28, 12, v27")
    a.e("v_sub_u32 v28, v26, v28")
    a.e("v_lshrrev_b32 v29, 2, v27")
    a.e("v_and_b32 v29, 2, v29")
    a.e("v_xor_b32 v28, v28, v29")
    a.e("v_mul_u32_u24 v27, s59, v27")
    a.e("v_lshl_add_u32 v27, v28, 4, v27")
    a.e(f"v_add_u32 v{6+i}, s58, v27")
a.e("s_lshl_b32 s62, s55, 12")
a.e("s_mul_i32 s63, s55, 3072")
a.e("s_add_u32 s63, s63, 16384")
a.e("s_waitcnt lgkmcnt(0)")
srd(a, 8, 36, 2048 * 1024)
srd(a, 12, 38, 512 * 2752)
srd(a, 16, 40, 512 * 2752)

def issue(st):
    buf = (st % 4) * BUF
    a.e(f"s_add_u32 s59, s60, {st}")
    a.e("s_and_b32 s59, s59, 7")
    a.e("s_lshl_b32 s58, s59, 7")
    a.e("s_mul_i32 s59, s59, 176128")
    for t in range(4):
        a.e(f"s_add_u32 m0, s62, {buf + t*1024}")
        a.e("s_nop 0")
        a.vm_op(f"buffer_load_dwordx4 v{2+t}, s[8:11], s58 offen lds", ("st", st))
    for gu in range(2):
        for i in range(3):
            a.e(f"s_add_u32 m0, s63, {buf + gu*12288 + i*1024}")
            a.e("s_nop 0")
            a.vm_op(f"buffer_load_dwordx4 v{6+i}, s[{12+4*gu}:{15+4*gu}], s59 offen lds", ("st", st))
def issueW(qp):
    a.e(f"s_add_u32 s58, s98, {qp}")
    a.e("s_and_b32 s58, s58, 3")
    a.e("s_mul_i32 s58, s58, 327680")
    a.e("s_add_u32 s58, s58, s65")
    for i in range(10):
        a.e(f"s_add_u32 m0, s64, {qp*BUF + i*1024}")
        if i: a.e("s_add_u32 s58, s58, 8192")
        else: a.e("s_nop 0")
        a.vm_op(f"buffer_load_dwordx4 v{9 + (i & 1)}, s[24:27], s58 offen lds", ("st", 8 + qp))

issue(0)
if 'codepf' in OPT:
    a.e("s_getpc_b64 s[58:59]")
    a.e("s_and_b32 s58, s58, 0xffffff00")
    a.e("s_lshl_b32 s61, s55, 13")
    a.e("v_lshlrev_b32 v26, 7, v1")
    a.e("v_add_u32 v26, s61, v26")
    a.e("v_min_u32 v26, CODE_END_OFF, v26")
    a.vm_op("global_load_dword v27, v26, s[58:59]", ("st", 1))
issue(1)
a.e("v_and_b32 v21, 1, v21")
a.e("v_lshlrev_b32 v21, 1, v21")
a.e("v_xor_b32 v22, v22, v21")
a.e("s_lshl_b32 s58, s57, 7")
a.e("v_add_u32 v20, s58, v20")
a.e("v_lshl_add_u32 v9, v22, 4, v20")
a.e("v_xor_b32 v22, 4, v22")
a.e("v_lshl_add_u32 v10, v22, 4, v20")
srd(a, 24, 42, 1376 * 1024)
srd(a, 20, 48, H_BYTES)
srd(a, 28, 44, 2048 * 1024)
srd(a, 32, 46, 256)
srd(a, 4, 48, H_BYTES + 4096)
a.e("s_mul_i32 s64, s55, 10240")
a.e("s_mul_i32 s65, s55, 81920")
def optval(name, d):
    v = [o[len(name)+1:] for o in OPT if o.startswith(name + '=')]
    return int(v[0]) if v else d
WPF = optval('wpf', 0); PF0 = optval('pf0', 1); NPF = optval('npf', 6)
a.e("s_lshr_b32 s58, s2, 3")
a.e("s_lshl_b32 s58, s58, 2")
a.e("s_add_u32 s58, s58, s55")
a.e("s_mul_i32 s58, s58, 11008")
a.e("s_add_u32 s96, s42, s58")
a.e("s_addc_u32 s97, s43, 0")
RW = 136
XR = 80
def issueR(qp):
    a.e(f"s_add_u32 s58, s98, {qp}")
    a.e("s_and_b32 s58, s58, 3")
    a.e("s_mul_i32 s58, s58, 327680")
    a.e("s_add_u32 s58, s58, s65")
    for i in range(10):
        r = RW + (qp - 1) * 40 + 4 * i
        a.vm_op(f"buffer_load_dwordx4 v[{r}:{r+3}], v{9 + (i & 1)}, s[24:27], s58 offen", ("r", qp))
        if i < 9: a.e("s_add_u32 s58, s58, 8192")
def vpf_setup():
    a.e("s_lshr_b32 s101, s2, 3")
    a.e("s_lshl_b32 s101, s101, 2")
    a.e("s_add_u32 s101, s101, s55")
    a.e("s_mul_i32 s101, s101, 11008")
    a.e("v_lshlrev_b32 v30, 7, v1")
    a.e("v_min_u32 v31, 21, v1")
    a.e("v_lshlrev_b32 v31, 7, v31")
    a.e("v_add_u32 v31, 8192, v31")
    a.e("s_lshl_b32 s58, s50, 4")
    a.e("s_lshr_b32 s59, s56, 1")
    a.e("s_lshl_b32 s59, s59, 4")
    a.e("v_mov_b32 v17, s58")
    a.e("v_mov_b32 v18, s59")
    a.e("v_cmp_gt_u32 vcc, 32, v1")
    a.e("s_nop 1")
    a.e("v_cndmask_b32 v17, v18, v17, vcc")
vpf_setup()
def issueX():
    a.e("s_add_u32 s58, s55, 40")
    a.e("s_lshl_b32 s58, s58, 15")
    for i in range(4):
        a.vm_op(f"buffer_load_dwordx4 v[{XR+4*i}:{XR+4*i+3}], v{9 + (i & 1)}, s[24:27], s58 offen", "xr")
        if i < 3: a.e("s_add_u32 s58, s58, 8192")
VP1 = optval('vp1', 6); VP2 = optval('vp2', 7)
for s in range(0, 8):
    a.wait(vm_tags=[("st", s)])
    if s == 6:
        a.e("v_cmp_eq_u32 vcc, 0, v20")
        a.e("s_cbranch_vccz L_POLLC_DONE")
        a.label("L_POLLC")
        a.e("buffer_load_dword v20, v17, s[32:35], 0 offen sc1")
        a.e("s_add_u32 s3, s3, 1")
        a.e(f"s_cmp_gt_u32 s3, {SPIN}")
        a.e("s_cbranch_scc1 L_POLLC_DONE")
        a.e("s_waitcnt vmcnt(0)")
        a.e("v_cmp_eq_u32 vcc, 0, v20")
        a.e("s_cbranch_vccnz L_POLLC")
        a.label("L_POLLC_DONE")
    a.e("s_barrier")
    if s == 0: a.stamp(1)
    if s == 4: a.vm_op("buffer_load_dword v20, v17, s[32:35], 0 offen sc1", "chk")
    if s + 2 < 8: issue(s + 2)
    if s == VP1: a.vm_op("buffer_load_dword v32, v30, s[24:27], s101 offen", "vpf")
    if s == VP2: a.vm_op("buffer_load_dword v33, v31, s[24:27], s101 offen", "vpf")
if 'early01' in OPT:
    issueW(0); issueW(1)
a.stamp(4)
a.e("s_barrier")
a.stamp(5)
for qp in range(2 if 'early01' in OPT else 0, 4): issueW(qp)
issueX()
a.stamp(6)
a.e("s_branch L_G2")

a.reset()
a.e(".p2align 6")
a.label("L_COMPUTE")
a.e("s_and_b32 s62, s55, 1")
a.e("s_lshr_b32 s63, s55, 1")
a.e("v_and_b32 v20, 15, v1")
a.e("v_lshrrev_b32 v21, 4, v1")
a.e("v_bfe_u32 v22, v20, 1, 3")
a.e("v_xor_b32 v22, v22, v21")
a.e("v_lshlrev_b32 v22, 4, v22")
a.e("v_lshl_add_u32 v22, v20, 7, v22")
a.e("s_lshl_b32 s58, s62, 13")
a.e("v_add_u32 v2, s58, v22")
a.e("v_xor_b32 v3, 64, v2")
a.e(f"v_add_u32 v4, {2*BUF}, v2")
a.e(f"v_add_u32 v5, {2*BUF}, v3")
a.e("v_bfe_u32 v22, v1, 2, 2")
a.e("v_lshl_add_u32 v22, v21, 3, v22")
a.e("v_mul_u32_u24 v22, 192, v22")
a.e("v_and_b32 v23, 3, v1")
a.e("v_lshl_add_u32 v22, v23, 3, v22")
a.e("v_add_u32 v22, 16384, v22")
a.e("v_and_b32 v23, 1, v21")
a.e("s_mul_i32 s64, s63, s53")
for ft in range(3):
    a.e(f"s_add_u32 s58, s64, {ft}")
    a.e("v_xor_b32 v24, s58, v23")
    a.e(f"v_lshl_add_u32 v{6+ft}, v24, 5, v22")
    a.e(f"v_add_u32 v{9+ft}, {2*BUF}, v{6+ft}")
a.e("v_lshlrev_b32 v24, 10, v23")
a.e("v_lshrrev_b32 v25, 1, v21")
a.e("v_lshl_add_u32 v24, v25, 8, v24")
a.e("v_lshl_add_u32 v24, v20, 4, v24")
a.e("s_lshl_b32 s58, s50, 3")
a.e("s_lshl_b32 s59, s62, 2")
a.e("s_add_u32 s58, s58, s59")
a.e("s_lshl_b32 s58, s58, 10")
a.e("v_add_u32 v12, s58, v24")
a.e(f"v_mov_b32 v14, 0x{f2u(C1):08x}")
a.e(f"v_mov_b32 v15, 0x{f2u(C1):08x}")
a.e(f"s_mov_b32 s90, 0x{f2u(C2):08x}")
a.e(f"s_mov_b32 s91, 0x{f2u(C2):08x}")
a.e("s_mov_b32 s92, 1.0")
a.e("s_mov_b32 s93, 1.0")
a.e("s_lshl_b32 s60, s52, 1")
a.e("s_add_u32 s60, s60, s64")
for ft in range(3):
    a.e(f"s_add_u32 s58, s60, {ft}")
    a.e("s_lshr_b32 s59, s58, 1")
    a.e("s_lshl_b32 s59, s59, 17")
    a.e("s_and_b32 s58, s58, 1")
    a.e("s_lshl_b32 s58, s58, 9")
    a.e(f"s_add_u32 s{94+ft}, s58, s59")
a.e("s_lshl_b32 s61, s50, 1")
a.e("s_add_u32 s61, s61, s62")
a.e("s_lshl_b32 s61, s61, 7")
a.e("s_lshl_b32 s58, s51, 1")
a.e("s_add_u32 s58, s58, s63")
a.e("s_lshl_b32 s58, s58, 2")
a.e("s_add_u32 s61, s61, s58")
a.e(f"s_add_u32 s61, s61, {H_BYTES}")
a.e("v_mov_b32 v13, 0")
a.e("s_waitcnt lgkmcnt(0)")
srd(a, 20, 48, H_BYTES)
srd(a, 28, 44, 2048 * 1024)
srd(a, 32, 46, 256)
srd(a, 4, 48, H_BYTES + 4096)
if 'mallpf' in OPT:
    a.e("s_cmp_lg_u32 s54, 5")
    a.e("s_cbranch_scc1 L_NOMPF")
    srd(a, 24, 42, 1376 * 1024)
    a.e("s_mul_i32 s58, s2, 5504")
    a.e("v_min_u32 v24, 42, v1")
    a.e("v_lshlrev_b32 v24, 7, v24")
    a.e("buffer_load_dword v200, v24, s[24:27], s58 offen")
    a.label("L_NOMPF")
a.e("s_lshl_b32 s97, s51, 3")
a.e("s_add_u32 s97, s97, s54")
a.e("s_cmp_lg_u32 s97, 4")
a.e("s_cbranch_scc1 L_NOCLR")
a.e("v_lshlrev_b32 v24, 2, v1")
a.e("buffer_store_dword v13, v24, s[4:7], s61 offen sc1")
a.label("L_NOCLR")
if 'noprio' not in OPT: a.e("s_setprio 3")

def WF(n, j): return 16 + 24 * (n & 1) + 4 * j
def XF(n, mi): return 64 + 16 * (n & 1) + 4 * mi
def ACC(j, mi): return 96 + 16 * j + 4 * mi
def read_x(n, mis):
    st, s2 = n >> 1, n & 1
    b = st % 4
    reg = (2 if b < 2 else 4) + s2
    for mi in mis:
        a.lds_op(f"ds_read_b128 v[{XF(n,mi)}:{XF(n,mi)+3}], v{reg} offset:{(b & 1) * BUF + mi * 2048}", ("x", n, mi))
def read_w(n, j):
    st, s2 = n >> 1, n & 1
    b = st % 4
    ft, gu = j >> 1, j & 1
    reg = (6 if b < 2 else 9) + ft
    for h in range(2):
        off = (b & 1) * BUF + gu * 12288 + s2 * 6144 + h * 768
        a.lds_op(f"ds_read_b64_tr_b16 v[{WF(n,j)+2*h}:{WF(n,j)+2*h+1}], v{reg} offset:{off}", ("w", n, j))

a.e("s_barrier")
a.stamp(1)
read_w(0, 0)
read_x(0, range(4))
CLRB = 3
def cnt_add():
    a.e("s_cmp_lg_u32 s97, 4")
    a.e("s_cbranch_scc1 L_NOCNT")
    a.e("v_mov_b32 v192, 1")
    a.e("s_lshl_b32 s58, s50, 4")
    a.e("s_waitcnt vmcnt(0)")
    a.e("s_mov_b64 exec, 1")
    a.e("buffer_store_dword v192, v13, s[32:35], s58 offen sc1")
    a.e("s_mov_b64 exec, -1")
    a.label("L_NOCNT")
for j in range(1, 6): read_w(0, j)
NS = 16
B7J = optval('b7j', 0)
for n in range(NS):
    st, s2 = n >> 1, n & 1
    nxt = n + 1 < NS
    if s2 == 1 and st < 7:
        a.e("s_barrier")
        if st in (1, 3, 5): a.stamp(2 + (st >> 1))
        if st == 0: cnt_add()

    for j in range(6):
        for mi in range(4):
            if mi == 0 or j == 0:
                a.wait(lds_tags=[("w", n, j), ("x", n, mi)])
            if n == 15 and j == 5 and mi == 0: a.e("s_barrier")
            cin = "0" if n == 0 else f"v[{ACC(j,mi)}:{ACC(j,mi)+3}]"
            a.e(f"v_mfma_f32_16x16x32_bf16 v[{ACC(j,mi)}:{ACC(j,mi)+3}], v[{WF(n,j)}:{WF(n,j)+3}], v[{XF(n,mi)}:{XF(n,mi)+3}], {cin}")
            if nxt:
                if j == 0 and mi == 0: read_w(n + 1, 0)
                if j == 0 and mi == 2: read_x(n + 1, [0, 1])
                if j == 1 and mi == 0: read_x(n + 1, [2, 3])
                if j == 1 and mi == 2: read_w(n + 1, 1)
                if j >= 2 and mi == 0: read_w(n + 1, j)
a.e("s_nop 7")
a.stamp(5)
T = 16
for ft in range(3):
    if ft == 2:
        a.e("s_cmp_lt_u32 s53, 3")
        a.e("s_cbranch_scc1 L_EPI_DONE")
    for pr in range(2):
        G, U = ACC(2 * ft, 2 * pr), ACC(2 * ft + 1, 2 * pr)
        t0 = T + 16 * pr
        p0 = t0 + 8
        ps = range(0, 8, 2)
        if 'nopk' not in OPT:
            for r in ps: a.e(f"v_pk_mul_f32 v[{t0+r}:{t0+r+1}], v[{G+r}:{G+r+1}], v[{G+r}:{G+r+1}]")
            for r in ps: a.e(f"v_pk_fma_f32 v[{t0+r}:{t0+r+1}], v[{t0+r}:{t0+r+1}], s[90:91], v[14:15]")
            for r in ps: a.e(f"v_pk_mul_f32 v[{t0+r}:{t0+r+1}], v[{t0+r}:{t0+r+1}], v[{G+r}:{G+r+1}]")
            for r in range(8): a.e(f"v_exp_f32 v{t0+r}, v{t0+r}")
            for r in ps: a.e(f"v_pk_mul_f32 v[{p0+r}:{p0+r+1}], v[{G+r}:{G+r+1}], v[{U+r}:{U+r+1}]")
            for r in ps: a.e(f"v_pk_add_f32 v[{t0+r}:{t0+r+1}], v[{t0+r}:{t0+r+1}], s[92:93]")
            for r in range(8): a.e(f"v_rcp_f32 v{t0+r}, v{t0+r}")
            a.e("s_nop 0")
            for r in ps: a.e(f"v_pk_mul_f32 v[{t0+r}:{t0+r+1}], v[{t0+r}:{t0+r+1}], v[{p0+r}:{p0+r+1}]")
        else:
            rs = range(8)
            for r in rs: a.e(f"v_mul_f32 v{t0+r}, v{G+r}, v{G+r}")
            for r in rs: a.e(f"v_fmamk_f32 v{t0+r}, v{t0+r}, 0x{f2u(C2):08x}, v14")
            for r in rs: a.e(f"v_mul_f32 v{t0+r}, v{t0+r}, v{G+r}")
            for r in rs: a.e(f"v_exp_f32 v{t0+r}, v{t0+r}")
            for r in rs: a.e(f"v_mul_f32 v{p0+r}, v{G+r}, v{U+r}")
            for r in rs: a.e(f"v_add_f32 v{t0+r}, 1.0, v{t0+r}")
            for r in rs: a.e(f"v_rcp_f32 v{t0+r}, v{t0+r}")
            a.e("s_nop 0")
            for r in rs: a.e(f"v_mul_f32 v{t0+r}, v{t0+r}, v{p0+r}")
        O = 64 + 8 * ft + 4 * pr
        for i in range(4): a.e(f"v_cvt_pk_bf16_f32 v{O+i}, v{t0+2*i}, v{t0+2*i+1}")
        a.e("s_nop 1")
        a.e(f"v_permlane16_swap_b32 v{O}, v{O+2}")
        a.e(f"v_permlane16_swap_b32 v{O+1}, v{O+3}")
        a.e(f"buffer_store_dwordx4 v[{O}:{O+3}], v12, s[20:23], s{94+ft} offen offset:{pr*2048} sc1")
a.label("L_EPI_DONE")
a.stamp(6)
a.e("s_waitcnt vmcnt(0)")
a.e("v_mov_b32 v88, 1")
a.e("s_mov_b64 exec, 1")
a.e("buffer_store_dword v88, v13, s[4:7], s61 offen sc1")
a.e("s_mov_b64 exec, -1")
a.e("s_setprio 0")

a.reset()
a.label("L_G2")
a.e("s_lshr_b32 s63, s54, 2")
a.e("v_lshrrev_b32 v21, 4, v1")
a.e("v_and_b32 v23, 1, v21")
a.e("v_bfe_u32 v22, v1, 2, 2")
a.e("v_lshl_add_u32 v22, v21, 3, v22")
a.e("v_lshlrev_b32 v22, 7, v22")
a.e("v_and_b32 v24, 1, v1")
a.e("v_lshl_add_u32 v22, v24, 3, v22")
a.e("v_bfe_u32 v24, v1, 1, 1")
a.e("v_lshl_add_u32 v22, v24, 4, v22")
a.e(f"s_mul_i32 s58, s55, {BUF}")
a.e("v_add_u32 v22, s58, v22")
a.e("v_bfe_u32 v24, v1, 3, 1")
a.e("v_lshl_add_u32 v24, v23, 1, v24")
a.e("v_lshlrev_b32 v24, 1, v24")
for j in range(4):
    a.e(f"v_xor_b32 v25, {2*j}, v24")
    a.e(f"v_lshl_add_u32 v{2+j}, v25, 4, v22")
a.e("v_lshlrev_b32 v14, 4, v1")
a.e("s_mov_b32 s65, s57")
a.e("s_mov_b32 s62, s65")
a.e("s_lshl_b32 s60, s65, 12")
a.e("s_add_u32 s58, s58, s60")
a.e("v_add_u32 v7, s58, v14")
a.e("s_add_u32 s64, s55, s98")
a.e("s_and_b32 s64, s64, 3")
a.e("s_mul_i32 s64, s64, 10")
a.e(f"s_mul_i32 s58, s55, {BUF}")
a.e("s_lshl_b32 s59, s63, 13")
a.e("s_add_u32 s58, s58, s59")
a.e("v_add_u32 v15, s58, v14")
a.e("s_lshl_b32 s58, s56, 12")
a.e("s_lshl_b32 s59, s63, 11")
a.e("s_add_u32 s58, s58, s59")
a.e("v_add_u32 v6, s58, v14")
a.e("v_and_b32 v24, 31, v1")
a.e("v_lshlrev_b32 v13, 2, v24")
a.e("v_lshrrev_b32 v24, 1, v24")
a.e("v_mul_u32_u24 v25, 43, v24")
a.e("v_add_u32 v26, 43, v25")
a.e("v_lshrrev_b32 v25, 4, v25")
a.e("v_lshrrev_b32 v26, 4, v26")
a.e("s_add_u32 s58, s64, 10")
a.e("v_cmp_gt_u32 s[90:91], s58, v25")
a.e("v_cmp_lt_u32 s[92:93], s64, v26")
a.e("s_and_b64 s[90:91], s[90:91], s[92:93]")
a.e("v_cmp_eq_u32 s[92:93], 15, v24")
a.e("s_or_b64 s[90:91], s[90:91], s[92:93]")
a.e("s_lshl_b32 s61, s56, 7")
a.e(f"s_add_u32 s61, s61, {H_BYTES}")
def HB(i, mi): return 96 + i * 8 + 4 * mi
def AFR(i, j): return 16 + (i & 1) * 16 + 4 * j
def ACC2(j, mi): return 48 + 16 * mi + 4 * j
def HS(i): return f"s{70+i if not DIAG else 8+i}"
def h_soff(i):
    if i < 10:
        a.e("s_add_u32 s58, s64, s65")
        a.e(f"s_lshl_b32 {HS(i)}, s58, 17")
        a.e("s_add_u32 s65, s65, 1")
        a.e("s_cmp_eq_u32 s65, 10")
        a.e("s_cselect_b32 s65, 0, s65")
    else:
        a.e("s_add_u32 s58, s55, 40")
        a.e(f"s_lshl_b32 {HS(i)}, s58, 17")
def h_loads(i):
    for mi in range(2):
        a.vm_op(f"buffer_load_dwordx4 v[{HB(i,mi)}:{HB(i,mi)+3}], v6, s[20:23], {HS(i)} offen offset:{mi*1024} sc1", ("h", i))
def a_addr(i):
    if i < 10:
        a.e("s_lshl_b32 s59, s62, 12")
        a.e("s_add_u32 s62, s62, 1")
        a.e("s_cmp_eq_u32 s62, 10")
        a.e("s_cselect_b32 s62, 0, s62")
        sreg = "s59"
    else: sreg = "s60"
    for j in range(4): a.e(f"v_add_u32 v{8+j}, {sreg}, v{2+j}")
def a_read(i, j):
    for hh in range(2):
        a.lds_op(f"ds_read_b64_tr_b16 v[{AFR(i,j)+2*hh}:{AFR(i,j)+2*hh+1}], v{8+j} offset:{hh*512}", ("a", i, j))
for i in range(11): h_soff(i)
a_addr(0)
a.e("s_waitcnt vmcnt(0)")
a.e("s_barrier")
a.stamp(7)
for j in range(4): a_read(0, j)
a.wait_all_lds()
a.e("s_barrier")
a.e("s_cmp_ge_u32 s54, 4")
a.e("s_cbranch_scc1 L_NOXW")
for q in range(4):
    a.e(f"ds_write_b128 v7, v[{XR+4*q}:{XR+4*q+3}] offset:{q*1024}")
a.e("s_waitcnt lgkmcnt(0)")
a.label("L_NOXW")
a.e("s_barrier")
if optval('dly', 0): a.e(f"s_sleep {optval('dly', 0)}")
a.label("L_POLL")
a.e("buffer_load_dword v12, v13, s[4:7], s61 offen sc1")
a.e("s_add_u32 s3, s3, 1")
a.e(f"s_cmp_gt_u32 s3, {SPIN}")
a.e("s_cbranch_scc1 L_POLLDONE")
a.e("s_waitcnt vmcnt(0)")
a.e("v_cmp_ne_u32 vcc, 1, v12")
a.e("s_and_b64 vcc, vcc, s[90:91]")
a.e("s_cbranch_vccnz L_POLL")
a.label("L_POLLDONE")
a.stamp(8)
for i in range(11): h_loads(i)
for i in range(11):
    if i + 1 < 11: a_addr(i + 1)
    a.wait(vm_tags=[("h", i)])
    if i == 0: a.stamp(9)
    for j in range(4):
        a.wait(lds_tags=[("a", i, j)])
        for mi in range(2):
            cin = "0" if i == 0 else f"v[{ACC2(j,mi)}:{ACC2(j,mi)+3}]"
            a.e(f"v_mfma_f32_16x16x32_bf16 v[{ACC2(j,mi)}:{ACC2(j,mi)+3}], v[{AFR(i,j)}:{AFR(i,j)+3}], v[{HB(i,mi)}:{HB(i,mi)+3}], {cin}")
            if mi == 0 and i + 1 < 11: a_read(i + 1, j)
a.stamp(10)
a.e("s_barrier")
a.e("s_nop 7")
for mi in range(2):
    for j in range(4):
        a.e(f"ds_write_b128 v15, v[{ACC2(j,mi)}:{ACC2(j,mi)+3}] offset:{mi*4096 + j*1024}")
a.e("s_lshl_b32 s58, s55, 12")
a.e("s_lshl_b32 s59, s63, 11")
a.e("s_add_u32 s58, s58, s59")
a.e("v_add_u32 v8, s58, v14")
a.e(f"v_add_u32 v9, {2*BUF}, v8")
a.e("s_lshl_b32 s58, s56, 6")
a.e("s_lshl_b32 s59, s55, 4")
a.e("s_add_u32 s58, s58, s59")
a.e("s_lshl_b32 s58, s58, 10")
a.e("s_lshl_b32 s59, s57, 7")
a.e("s_add_u32 s58, s58, s59")
a.e("s_lshl_b32 s59, s63, 6")
a.e("s_add_u32 s58, s58, s59")
a.e("v_and_b32 v10, 15, v1")
a.e("v_lshlrev_b32 v10, 10, v10")
a.e("v_bfe_u32 v11, v1, 4, 1")
a.e("v_lshl_add_u32 v10, v11, 5, v10")
a.e("v_lshrrev_b32 v11, 5, v1")
a.e("v_lshl_add_u32 v10, v11, 4, v10")
a.wait_all_lds()
a.e("s_barrier")
for src in range(4):
    for jj in range(2):
        r = 96 + 8 * src + 4 * jj
        a.e(f"ds_read_b128 v[{r}:{r+3}], v{8 + (src >> 1)} offset:{(src & 1)*BUF + jj*1024}")
a.e("s_waitcnt lgkmcnt(4)")
for k in range(0, 8, 2): a.e(f"v_pk_add_f32 v[{96+k}:{97+k}], v[{96+k}:{97+k}], v[{104+k}:{105+k}]")
a.e("s_waitcnt lgkmcnt(0)")
for k in range(0, 8, 2): a.e(f"v_pk_add_f32 v[{112+k}:{113+k}], v[{112+k}:{113+k}], v[{120+k}:{121+k}]")
for k in range(0, 8, 2): a.e(f"v_pk_add_f32 v[{96+k}:{97+k}], v[{96+k}:{97+k}], v[{112+k}:{113+k}]")
for k in range(4): a.e(f"v_cvt_pk_bf16_f32 v{16+k}, v{96+2*k}, v{96+2*k+1}")
a.e("s_nop 1")
a.e("v_permlane16_swap_b32 v16, v18")
a.e("v_permlane16_swap_b32 v17, v19")
OUTF = ' sc1' if 'outsc1' in OPT else ' nt' if 'outnt' in OPT else ''
a.e(f"buffer_store_dwordx4 v[16:19], v10, s[28:31], s58 offen{OUTF}")
a.dump_stamps(11)
a.label("L_END")
a.e("s_endpgm")
a.label("L_CODE_END")

HDR = open("standalone__glu_gated_geglu__prompt.s.ref").read().split("; Override")[0]
out = HDR + "; @launch grid=(256,1,1) block=(512,1,1) lds=163840\n"
out += f'.amdgcn_target "amdgcn-amd-amdhsa--gfx950"\n.text\n.globl {KN}\n.p2align 8\n.type {KN},@function\n'
out += f".set CODE_END_OFF, L_CODE_END - {KN} - 1024\n"
out += a.text() + f"""
.section .rodata,"a"
.p2align 6
.amdhsa_kernel {KN}
  .amdhsa_next_free_vgpr 256
  .amdhsa_next_free_sgpr 102
  .amdhsa_accum_offset 256
  .amdhsa_group_segment_fixed_size 0
  .amdhsa_kernarg_size 56
  .amdhsa_user_sgpr_count 2
  .amdhsa_user_sgpr_kernarg_segment_ptr 1
  .amdhsa_system_sgpr_workgroup_id_x 1
.end_amdhsa_kernel
"""
open(sys.argv[1], "w").write(out)
```

```python
import sys, struct
OPT = set(sys.argv[2:])
DIAG = 'diag' in OPT
KN = "standalone__glu_gated_geglu__prompt_kernel"
def f2u(x): return struct.unpack("<I", struct.pack("<f", x))[0]

class Asm:
    def __init__(self):
        self.lines = []; self.lds = []; self.vm = []; self.nst = 0
    def e(self, s): self.lines.append("    " + s)
    def label(self, s): self.lines.append(s + ":")
    def c(self, s): self.lines.append("    ; " + s)
    def reset(self): self.lds = []; self.vm = []
    def lds_op(self, s, tag=None): self.e(s); self.lds.append(tag)
    def vm_op(self, s, tag=None): self.e(s); self.vm.append(tag)
    def _need(self, q, tags):
        last = -1
        for i, t in enumerate(q):
            if t in tags: last = i
        return last
    def wait(self, lds_tags=(), vm_tags=()):
        parts = []
        if vm_tags:
            last = self._need(self.vm, vm_tags)
            if last >= 0:
                n = len(self.vm) - 1 - last
                assert n <= 63, n
                parts.append(f"vmcnt({n})"); self.vm = self.vm[last + 1:]
        if lds_tags:
            last = self._need(self.lds, lds_tags)
            if last >= 0:
                n = min(len(self.lds) - 1 - last, 15)
                parts.append(f"lgkmcnt({n})")
                self.lds = self.lds[len(self.lds) - n:] if n else []
        if parts: self.e("s_waitcnt " + " ".join(parts))
    def wait_all_lds(self): self.e("s_waitcnt lgkmcnt(0)"); self.lds = []
    def wait_all_vm(self): self.e("s_waitcnt vmcnt(0)"); self.vm = []
    def text(self): return "\n".join(self.lines)
    def stamp(self, k):
        if not DIAG: return
        op = "s_memtime" if 'clk' in OPT else "s_memrealtime"
        self.e(f"{op} s[{68+2*k}:{69+2*k}]")
        self.e("s_waitcnt lgkmcnt(0)"); self.lds = []
    def dump_stamps(self, n):
        if not DIAG: return
        self.e("s_waitcnt vmcnt(0)")
        self.e("s_memrealtime s[66:67]")
        self.e("s_waitcnt lgkmcnt(0)")
        self.e("s_mov_b32 s22, 0x10000000")
        self.e("s_lshl_b32 s64, s2, 4"); self.e("s_add_u32 s64, s64, s54"); self.e("s_lshl_b32 s64, s64, 7")
        self.e("s_add_u32 s64, s64, 0x4000000")
        self.e("v_mov_b32 v1, 0")
        for k in range(n):
            self.e(f"v_mov_b32 v2, s{68+2*k}")
            self.e(f"buffer_store_dword v2, v1, s[20:23], s64 offen offset:{4*k}")
        self.e("v_mov_b32 v3, s66")
        self.e(f"buffer_store_dword v3, v1, s[20:23], s64 offen offset:{4*n}")
        self.e("v_mov_b32 v3, s3")
        self.e(f"buffer_store_dword v3, v1, s[20:23], s64 offen offset:120")

H_BYTES = 43 * 128 * 1024
C1 = -2.0 * 1.4426950408889634 * 0.7978845608028654
C2 = C1 * 0.044715
BUF = 40960
SPIN = 0x40000
HOFF = [int(o[5:]) for o in OPT if o.startswith('hoff=')]
HOFF = (HOFF[0] << 20) if HOFF else 0
def srd(a, d, lo, nbytes):
    if lo == 48 and HOFF:
        a.e(f"s_add_u32 s{d}, s{lo}, {HOFF}")
        a.e(f"s_addc_u32 s{d+1}, s{lo+1}, 0")
        a.e(f"s_and_b32 s{d+1}, s{d+1}, 0xffff")
        a.e(f"s_mov_b32 s{d+2}, {nbytes}")
        a.e(f"s_mov_b32 s{d+3}, 0x20000")
        return
    a.e(f"s_mov_b32 s{d}, s{lo}")
    a.e(f"s_and_b32 s{d+1}, s{lo+1}, 0xffff")
    a.e(f"s_mov_b32 s{d+2}, {nbytes}")
    a.e(f"s_mov_b32 s{d+3}, 0x20000")

a = Asm()
a.label(KN)
a.e("s_cmp_ge_u32 s2, 256")
a.e("s_cbranch_scc1 L_END")
a.e("s_load_dwordx8 s[36:43], s[0:1], 0")
a.e("s_load_dwordx4 s[44:47], s[0:1], 32")
a.e("s_load_dwordx2 s[48:49], s[0:1], 48")
if DIAG:
    a.e("s_memrealtime s[68:69]")
    for k in range(1, 15): a.e(f"s_mov_b32 s{68+2*k}, 0")
a.e("v_and_b32 v1, 63, v0")
a.e("v_lshrrev_b32 v2, 6, v0")
a.e("s_and_b32 s58, s2, 7")
a.e("v_readfirstlane_b32 s54, v2")
a.e("s_lshr_b32 s59, s2, 3")
a.e("s_and_b32 s50, s58, 1")
a.e("s_lshl_b32 s50, s50, 3")
a.e("s_and_b32 s57, s59, 7")
a.e("s_add_u32 s50, s50, s57")
a.e("s_lshr_b32 s51, s58, 1")
a.e("s_lshl_b32 s51, s51, 2")
a.e("s_lshr_b32 s61, s59, 3")
a.e("s_add_u32 s51, s51, s61")
a.e("s_mul_i32 s52, s51, 43")
a.e("s_add_u32 s53, s52, 43")
a.e("s_lshr_b32 s52, s52, 4")
a.e("s_lshr_b32 s53, s53, 4")
a.e("s_sub_u32 s53, s53, s52")
a.e("s_lshl_b32 s56, s58, 2")
a.e("s_add_u32 s56, s56, s61")
a.e("s_and_b32 s55, s54, 3")
a.e("s_mov_b32 s100, s57")
if 'nt2shift' in OPT:
    a.e("s_add_u32 s57, s57, 2")
    a.e("s_and_b32 s57, s57, 7")
a.e("s_mov_b32 s98, s56")
a.e("s_mov_b32 s3, 0")
a.e("s_cmp_ge_u32 s54, 4")
a.e("s_cbranch_scc1 L_COMPUTE")

a.c("LOADER")
a.e("s_lshl_b32 s60, s61, 1")
a.e("s_add_u32 s60, s60, s100")
a.e("v_lshrrev_b32 v20, 3, v1")
a.e("v_lshrrev_b32 v21, 4, v1")
a.e("v_and_b32 v22, 7, v1")
a.e("v_xor_b32 v24, v22, v21")
a.e("v_xor_b32 v23, 4, v24")
a.e("s_lshl_b32 s58, s50, 7")
a.e("s_lshl_b32 s59, s55, 5")
a.e("s_add_u32 s58, s58, s59")
a.e("s_lshl_b32 s58, s58, 10")
a.e("v_lshlrev_b32 v20, 10, v20")
a.e("v_add_u32 v25, s58, v20")
a.e("v_lshl_add_u32 v2, v24, 4, v25")
a.e("v_lshl_add_u32 v3, v23, 4, v25")
a.e("v_add_u32 v3, 8192, v3")
a.e("v_add_u32 v4, 16384, v2")
a.e("v_add_u32 v5, 16384, v3")
a.e("s_mul_i32 s58, s55, 44032")
a.e("s_lshl_b32 s59, s52, 6")
a.e("s_add_u32 s58, s58, s59")
a.e("s_movk_i32 s59, 2752")
for i in range(3):
    a.e(f"v_add_u32 v26, {64*i}, v1")
    a.e("v_mul_u32_u24 v27, 171, v26")
    a.e("v_lshrrev_b32 v27, 11, v27")
    a.e("v_mul_u32_u24 v28, 12, v27")
    a.e("v_sub_u32 v28, v26, v28")
    a.e("v_lshrrev_b32 v29, 2, v27")
    a.e("v_and_b32 v29, 2, v29")
    a.e("v_xor_b32 v28, v28, v29")
    a.e("v_mul_u32_u24 v27, s59, v27")
    a.e("v_lshl_add_u32 v27, v28, 4, v27")
    a.e(f"v_add_u32 v{6+i}, s58, v27")
a.e("s_lshl_b32 s62, s55, 12")
a.e("s_mul_i32 s63, s55, 3072")
a.e("s_add_u32 s63, s63, 16384")
a.e("s_waitcnt lgkmcnt(0)")
srd(a, 8, 36, 2048 * 1024)
srd(a, 12, 38, 512 * 2752)
srd(a, 16, 40, 512 * 2752)

def issue(st):
    buf = (st % 4) * BUF
    a.e(f"s_add_u32 s59, s60, {st}")
    a.e("s_and_b32 s59, s59, 7")
    a.e("s_lshl_b32 s58, s59, 7")
    a.e("s_mul_i32 s59, s59, 176128")
    for t in range(4):
        a.e(f"s_add_u32 m0, s62, {buf + t*1024}")
        a.e("s_nop 0")
        a.vm_op(f"buffer_load_dwordx4 v{2+t}, s[8:11], s58 offen lds", ("st", st))
    for gu in range(2):
        for i in range(3):
            a.e(f"s_add_u32 m0, s63, {buf + gu*12288 + i*1024}")
            a.e("s_nop 0")
            a.vm_op(f"buffer_load_dwordx4 v{6+i}, s[{12+4*gu}:{15+4*gu}], s59 offen lds", ("st", st))
def issueW(qp):
    a.e(f"s_add_u32 s58, s98, {qp}")
    a.e("s_and_b32 s58, s58, 3")
    a.e("s_mul_i32 s58, s58, 327680")
    a.e("s_add_u32 s58, s58, s65")
    for i in range(10):
        a.e(f"s_add_u32 m0, s64, {qp*BUF + i*1024}")
        if i: a.e("s_add_u32 s58, s58, 8192")
        else: a.e("s_nop 0")
        a.vm_op(f"buffer_load_dwordx4 v{9 + (i & 1)}, s[24:27], s58 offen lds", ("st", 8 + qp))

issue(0)
if 'codepf' in OPT:
    a.e("s_getpc_b64 s[58:59]")
    a.e("s_and_b32 s58, s58, 0xffffff00")
    a.e("s_lshl_b32 s61, s55, 13")
    a.e("v_lshlrev_b32 v26, 7, v1")
    a.e("v_add_u32 v26, s61, v26")
    a.e("v_min_u32 v26, CODE_END_OFF, v26")
    a.vm_op("global_load_dword v27, v26, s[58:59]", ("st", 1))
issue(1)
a.e("v_and_b32 v21, 1, v21")
a.e("v_lshlrev_b32 v21, 1, v21")
a.e("v_xor_b32 v22, v22, v21")
a.e("s_lshl_b32 s58, s57, 7")
a.e("v_add_u32 v20, s58, v20")
a.e("v_lshl_add_u32 v9, v22, 4, v20")
a.e("v_xor_b32 v22, 4, v22")
a.e("v_lshl_add_u32 v10, v22, 4, v20")
srd(a, 24, 42, 1376 * 1024)
srd(a, 20, 48, H_BYTES)
srd(a, 28, 44, 2048 * 1024)
srd(a, 32, 46, 256)
srd(a, 4, 48, H_BYTES + 4096)
a.e("s_mul_i32 s64, s55, 10240")
a.e("s_mul_i32 s65, s55, 81920")
def optval(name, d):
    v = [o[len(name)+1:] for o in OPT if o.startswith(name + '=')]
    return int(v[0]) if v else d
WPF = optval('wpf', 0); PF0 = optval('pf0', 1); NPF = optval('npf', 6)
a.e("s_lshr_b32 s58, s2, 3")
a.e("s_lshl_b32 s58, s58, 2")
a.e("s_add_u32 s58, s58, s55")
a.e("s_mul_i32 s58, s58, 11008")
a.e("s_add_u32 s96, s42, s58")
a.e("s_addc_u32 s97, s43, 0")
RW = 136
XR = 80
def issueR(qp):
    a.e(f"s_add_u32 s58, s98, {qp}")
    a.e("s_and_b32 s58, s58, 3")
    a.e("s_mul_i32 s58, s58, 327680")
    a.e("s_add_u32 s58, s58, s65")
    for i in range(10):
        r = RW + (qp - 1) * 40 + 4 * i
        a.vm_op(f"buffer_load_dwordx4 v[{r}:{r+3}], v{9 + (i & 1)}, s[24:27], s58 offen", ("r", qp))
        if i < 9: a.e("s_add_u32 s58, s58, 8192")
def vpf_setup():
    a.e("s_lshr_b32 s101, s2, 3")
    a.e("s_lshl_b32 s101, s101, 2")
    a.e("s_add_u32 s101, s101, s55")
    a.e("s_mul_i32 s101, s101, 11008")
    a.e("v_lshlrev_b32 v30, 7, v1")
    a.e("v_min_u32 v31, 21, v1")
    a.e("v_lshlrev_b32 v31, 7, v31")
    a.e("v_add_u32 v31, 8192, v31")
    a.e("s_lshl_b32 s58, s50, 4")
    a.e("s_lshr_b32 s59, s56, 1")
    a.e("s_lshl_b32 s59, s59, 4")
    a.e("v_mov_b32 v17, s58")
    a.e("v_mov_b32 v18, s59")
    a.e("v_cmp_gt_u32 vcc, 32, v1")
    a.e("s_nop 1")
    a.e("v_cndmask_b32 v17, v18, v17, vcc")
vpf_setup()
def issueX():
    a.e("s_add_u32 s58, s55, 40")
    a.e("s_lshl_b32 s58, s58, 15")
    for i in range(4):
        a.vm_op(f"buffer_load_dwordx4 v[{XR+4*i}:{XR+4*i+3}], v{9 + (i & 1)}, s[24:27], s58 offen", "xr")
        if i < 3: a.e("s_add_u32 s58, s58, 8192")
VP1 = optval('vp1', 6); VP2 = optval('vp2', 7)
for s in range(0, 8):
    a.wait(vm_tags=[("st", s)])
    if s == 6:
        a.e("v_cmp_eq_u32 vcc, 0, v20")
        a.e("s_cbranch_vccz L_POLLC_DONE")
        a.label("L_POLLC")
        a.e("buffer_load_dword v20, v17, s[32:35], 0 offen sc1")
        a.e("s_add_u32 s3, s3, 1")
        a.e(f"s_cmp_gt_u32 s3, {SPIN}")
        a.e("s_cbranch_scc1 L_POLLC_DONE")
        a.e("s_waitcnt vmcnt(0)")
        a.e("v_cmp_eq_u32 vcc, 0, v20")
        a.e("s_cbranch_vccnz L_POLLC")
        a.label("L_POLLC_DONE")
    a.e("s_barrier")
    if s == 0: a.stamp(1)
    if s == 4: a.vm_op("buffer_load_dword v20, v17, s[32:35], 0 offen sc1", "chk")
    if s + 2 < 8: issue(s + 2)
    if s == VP1: a.vm_op("buffer_load_dword v32, v30, s[24:27], s101 offen", "vpf")
    if s == VP2: a.vm_op("buffer_load_dword v33, v31, s[24:27], s101 offen", "vpf")
if 'early01' in OPT:
    issueW(0); issueW(1)
a.stamp(4)
a.e("s_barrier")
a.stamp(5)
for qp in range(2 if 'early01' in OPT else 0, 4): issueW(qp)
issueX()
a.stamp(6)
a.e("s_branch L_G2")

a.reset()
a.e(".p2align 6")
a.label("L_COMPUTE")
a.e("s_and_b32 s62, s55, 1")
a.e("s_lshr_b32 s63, s55, 1")
a.e("v_and_b32 v20, 15, v1")
a.e("v_lshrrev_b32 v21, 4, v1")
a.e("v_bfe_u32 v22, v20, 1, 3")
a.e("v_xor_b32 v22, v22, v21")
a.e("v_lshlrev_b32 v22, 4, v22")
a.e("v_lshl_add_u32 v22, v20, 7, v22")
a.e("s_lshl_b32 s58, s62, 13")
a.e("v_add_u32 v2, s58, v22")
a.e("v_xor_b32 v3, 64, v2")
a.e(f"v_add_u32 v4, {2*BUF}, v2")
a.e(f"v_add_u32 v5, {2*BUF}, v3")
a.e("v_bfe_u32 v22, v1, 2, 2")
a.e("v_lshl_add_u32 v22, v21, 3, v22")
a.e("v_mul_u32_u24 v22, 192, v22")
a.e("v_and_b32 v23, 3, v1")
a.e("v_lshl_add_u32 v22, v23, 3, v22")
a.e("v_add_u32 v22, 16384, v22")
a.e("v_and_b32 v23, 1, v21")
a.e("s_mul_i32 s64, s63, s53")
for ft in range(3):
    a.e(f"s_add_u32 s58, s64, {ft}")
    a.e("v_xor_b32 v24, s58, v23")
    a.e(f"v_lshl_add_u32 v{6+ft}, v24, 5, v22")
    a.e(f"v_add_u32 v{9+ft}, {2*BUF}, v{6+ft}")
a.e("v_lshlrev_b32 v24, 10, v23")
a.e("v_lshrrev_b32 v25, 1, v21")
a.e("v_lshl_add_u32 v24, v25, 8, v24")
a.e("v_lshl_add_u32 v24, v20, 4, v24")
a.e("s_lshl_b32 s58, s50, 3")
a.e("s_lshl_b32 s59, s62, 2")
a.e("s_add_u32 s58, s58, s59")
a.e("s_lshl_b32 s58, s58, 10")
a.e("v_add_u32 v12, s58, v24")
a.e(f"v_mov_b32 v14, 0x{f2u(C1):08x}")
a.e(f"v_mov_b32 v15, 0x{f2u(C1):08x}")
a.e(f"s_mov_b32 s90, 0x{f2u(C2):08x}")
a.e(f"s_mov_b32 s91, 0x{f2u(C2):08x}")
a.e("s_mov_b32 s92, 1.0")
a.e("s_mov_b32 s93, 1.0")
a.e("s_lshl_b32 s60, s52, 1")
a.e("s_add_u32 s60, s60, s64")
for ft in range(3):
    a.e(f"s_add_u32 s58, s60, {ft}")
    a.e("s_lshr_b32 s59, s58, 1")
    a.e("s_lshl_b32 s59, s59, 17")
    a.e("s_and_b32 s58, s58, 1")
    a.e("s_lshl_b32 s58, s58, 9")
    a.e(f"s_add_u32 s{94+ft}, s58, s59")
a.e("s_lshl_b32 s61, s50, 1")
a.e("s_add_u32 s61, s61, s62")
a.e("s_lshl_b32 s61, s61, 7")
a.e("s_lshl_b32 s58, s51, 1")
a.e("s_add_u32 s58, s58, s63")
a.e("s_lshl_b32 s58, s58, 2")
a.e("s_add_u32 s61, s61, s58")
a.e(f"s_add_u32 s61, s61, {H_BYTES}")
a.e("v_mov_b32 v13, 0")
a.e("s_waitcnt lgkmcnt(0)")
srd(a, 20, 48, H_BYTES)
srd(a, 28, 44, 2048 * 1024)
srd(a, 32, 46, 256)
srd(a, 4, 48, H_BYTES + 4096)
if 'mallpf' in OPT:
    a.e("s_cmp_lg_u32 s54, 5")
    a.e("s_cbranch_scc1 L_NOMPF")
    srd(a, 24, 42, 1376 * 1024)
    a.e("s_mul_i32 s58, s2, 5504")
    a.e("v_min_u32 v24, 42, v1")
    a.e("v_lshlrev_b32 v24, 7, v24")
    a.e("buffer_load_dword v200, v24, s[24:27], s58 offen")
    a.label("L_NOMPF")
if 'tlbpf' in OPT:
    SH = optval('tlbsh', 17)
    a.e("s_cmp_lg_u32 s54, 6")
    a.e("s_cbranch_scc1 L_NOTLB")
    srd(a, 24, 42, 1376 * 1024)
    a.e(f"v_lshlrev_b32 v24, {SH}, v1")
    a.e("buffer_load_dword v200, v24, s[4:7], 0 offen")
    a.e("buffer_load_dword v201, v24, s[24:27], 0 offen")
    a.e("buffer_load_dword v202, v24, s[28:31], 0 offen")
    a.label("L_NOTLB")
a.e("s_lshl_b32 s97, s51, 3")
a.e("s_add_u32 s97, s97, s54")
a.e("s_cmp_lg_u32 s97, 4")
a.e("s_cbranch_scc1 L_NOCLR")
a.e("v_lshlrev_b32 v24, 2, v1")
a.e("buffer_store_dword v13, v24, s[4:7], s61 offen sc1")
a.label("L_NOCLR")
if 'noprio' not in OPT: a.e("s_setprio 3")

def WF(n, j): return 16 + 24 * (n & 1) + 4 * j
def XF(n, mi): return 64 + 16 * (n & 1) + 4 * mi
def ACC(j, mi): return 96 + 16 * j + 4 * mi
def read_x(n, mis):
    st, s2 = n >> 1, n & 1
    b = st % 4
    reg = (2 if b < 2 else 4) + s2
    for mi in mis:
        a.lds_op(f"ds_read_b128 v[{XF(n,mi)}:{XF(n,mi)+3}], v{reg} offset:{(b & 1) * BUF + mi * 2048}", ("x", n, mi))
def read_w(n, j):
    st, s2 = n >> 1, n & 1
    b = st % 4
    ft, gu = j >> 1, j & 1
    reg = (6 if b < 2 else 9) + ft
    for h in range(2):
        off = (b & 1) * BUF + gu * 12288 + s2 * 6144 + h * 768
        a.lds_op(f"ds_read_b64_tr_b16 v[{WF(n,j)+2*h}:{WF(n,j)+2*h+1}], v{reg} offset:{off}", ("w", n, j))

a.e("s_barrier")
a.stamp(1)
read_w(0, 0)
read_x(0, range(4))
CLRB = 3
def cnt_add():
    a.e("s_cmp_lg_u32 s97, 4")
    a.e("s_cbranch_scc1 L_NOCNT")
    a.e("v_mov_b32 v192, 1")
    a.e("s_lshl_b32 s58, s50, 4")
    a.e("s_waitcnt vmcnt(0)")
    a.e("s_mov_b64 exec, 1")
    a.e("buffer_store_dword v192, v13, s[32:35], s58 offen sc1")
    a.e("s_mov_b64 exec, -1")
    a.label("L_NOCNT")
for j in range(1, 6): read_w(0, j)
NS = 16
B7J = optval('b7j', 0)
BJ = optval('bj', 0)
pending = []
for n in range(NS):
    st, s2 = n >> 1, n & 1
    nxt = n + 1 < NS
    reads = []
    if nxt:
        reads = [("w", 0), ("x", [0, 1]), ("x", [2, 3])] + [("w", j) for j in range(1, 6)]
    if s2 == 1 and st < 7 and BJ:
        start = BJ
        gap = optval('gap', 1)
        slots = [start + gap * k for k in range(8)]
    else:
        slots = [0, 2, 4, 6, 8, 12, 16, 20]
    carry = pending; pending = []
    for j in range(6):
        for mi in range(4):
            slot = 4 * j + mi
            if s2 == 1 and st < 7 and slot == BJ:
                a.e("s_barrier")
                if st in (1, 3, 5): a.stamp(2 + (st >> 1))
                if st == 0: cnt_add()
            if mi == 0 or j == 0:
                a.wait(lds_tags=[("w", n, j), ("x", n, mi)])
            if n == 15 and j == 5 and mi == 0: a.e("s_barrier")
            cin = "0" if n == 0 else f"v[{ACC(j,mi)}:{ACC(j,mi)+3}]"
            a.e(f"v_mfma_f32_16x16x32_bf16 v[{ACC(j,mi)}:{ACC(j,mi)+3}], v[{WF(n,j)}:{WF(n,j)+3}], v[{XF(n,mi)}:{XF(n,mi)+3}], {cin}")
            for k, sl in enumerate(slots):
                if sl == slot and k < len(reads):
                    kind, arg = reads[k]
                    if kind == "w": read_w(n + 1, arg)
                    else: read_x(n + 1, arg)
    assert all(sl < 24 for sl in slots)
a.e("s_nop 7")
a.stamp(5)
T = 16
for ft in range(3):
    if ft == 2:
        a.e("s_cmp_lt_u32 s53, 3")
        a.e("s_cbranch_scc1 L_EPI_DONE")
    for pr in range(2):
        G, U = ACC(2 * ft, 2 * pr), ACC(2 * ft + 1, 2 * pr)
        t0 = T + 16 * pr
        p0 = t0 + 8
        ps = range(0, 8, 2)
        if 'nopk' not in OPT:
            for r in ps: a.e(f"v_pk_mul_f32 v[{t0+r}:{t0+r+1}], v[{G+r}:{G+r+1}], v[{G+r}:{G+r+1}]")
            for r in ps: a.e(f"v_pk_fma_f32 v[{t0+r}:{t0+r+1}], v[{t0+r}:{t0+r+1}], s[90:91], v[14:15]")
            for r in ps: a.e(f"v_pk_mul_f32 v[{t0+r}:{t0+r+1}], v[{t0+r}:{t0+r+1}], v[{G+r}:{G+r+1}]")
            for r in range(8): a.e(f"v_exp_f32 v{t0+r}, v{t0+r}")
            for r in ps: a.e(f"v_pk_mul_f32 v[{p0+r}:{p0+r+1}], v[{G+r}:{G+r+1}], v[{U+r}:{U+r+1}]")
            for r in ps: a.e(f"v_pk_add_f32 v[{t0+r}:{t0+r+1}], v[{t0+r}:{t0+r+1}], s[92:93]")
            for r in range(8): a.e(f"v_rcp_f32 v{t0+r}, v{t0+r}")
            a.e("s_nop 0")
            for r in ps: a.e(f"v_pk_mul_f32 v[{t0+r}:{t0+r+1}], v[{t0+r}:{t0+r+1}], v[{p0+r}:{p0+r+1}]")
        else:
            rs = range(8)
            for r in rs: a.e(f"v_mul_f32 v{t0+r}, v{G+r}, v{G+r}")
            for r in rs: a.e(f"v_fmamk_f32 v{t0+r}, v{t0+r}, 0x{f2u(C2):08x}, v14")
            for r in rs: a.e(f"v_mul_f32 v{t0+r}, v{t0+r}, v{G+r}")
            for r in rs: a.e(f"v_exp_f32 v{t0+r}, v{t0+r}")
            for r in rs: a.e(f"v_mul_f32 v{p0+r}, v{G+r}, v{U+r}")
            for r in rs: a.e(f"v_add_f32 v{t0+r}, 1.0, v{t0+r}")
            for r in rs: a.e(f"v_rcp_f32 v{t0+r}, v{t0+r}")
            a.e("s_nop 0")
            for r in rs: a.e(f"v_mul_f32 v{t0+r}, v{t0+r}, v{p0+r}")
        O = 64 + 8 * ft + 4 * pr
        for i in range(4): a.e(f"v_cvt_pk_bf16_f32 v{O+i}, v{t0+2*i}, v{t0+2*i+1}")
        a.e("s_nop 1")
        a.e(f"v_permlane16_swap_b32 v{O}, v{O+2}")
        a.e(f"v_permlane16_swap_b32 v{O+1}, v{O+3}")
        a.e(f"buffer_store_dwordx4 v[{O}:{O+3}], v12, s[20:23], s{94+ft} offen offset:{pr*2048} sc1")
a.label("L_EPI_DONE")
a.stamp(6)
a.e("s_waitcnt vmcnt(0)")
a.e("v_mov_b32 v88, 1")
a.e("s_mov_b64 exec, 1")
a.e("buffer_store_dword v88, v13, s[4:7], s61 offen sc1")
a.e("s_mov_b64 exec, -1")
a.e("s_setprio 0")

a.reset()
a.label("L_G2")
a.e("s_lshr_b32 s63, s54, 2")
a.e("v_lshrrev_b32 v21, 4, v1")
a.e("v_and_b32 v23, 1, v21")
a.e("v_bfe_u32 v22, v1, 2, 2")
a.e("v_lshl_add_u32 v22, v21, 3, v22")
a.e("v_lshlrev_b32 v22, 7, v22")
a.e("v_and_b32 v24, 1, v1")
a.e("v_lshl_add_u32 v22, v24, 3, v22")
a.e("v_bfe_u32 v24, v1, 1, 1")
a.e("v_lshl_add_u32 v22, v24, 4, v22")
a.e(f"s_mul_i32 s58, s55, {BUF}")
a.e("v_add_u32 v22, s58, v22")
a.e("v_bfe_u32 v24, v1, 3, 1")
a.e("v_lshl_add_u32 v24, v23, 1, v24")
a.e("v_lshlrev_b32 v24, 1, v24")
for j in range(4):
    a.e(f"v_xor_b32 v25, {2*j}, v24")
    a.e(f"v_lshl_add_u32 v{2+j}, v25, 4, v22")
a.e("v_lshlrev_b32 v14, 4, v1")
a.e("s_mov_b32 s65, s57")
a.e("s_mov_b32 s62, s65")
a.e("s_lshl_b32 s60, s65, 12")
a.e("s_add_u32 s58, s58, s60")
a.e("v_add_u32 v7, s58, v14")
a.e("s_add_u32 s64, s55, s98")
a.e("s_and_b32 s64, s64, 3")
a.e("s_mul_i32 s64, s64, 10")
a.e(f"s_mul_i32 s58, s55, {BUF}")
a.e("s_lshl_b32 s59, s63, 13")
a.e("s_add_u32 s58, s58, s59")
a.e("v_add_u32 v15, s58, v14")
a.e("s_lshl_b32 s58, s56, 12")
a.e("s_lshl_b32 s59, s63, 11")
a.e("s_add_u32 s58, s58, s59")
a.e("v_add_u32 v6, s58, v14")
a.e("v_and_b32 v24, 31, v1")
a.e("v_lshlrev_b32 v13, 2, v24")
a.e("v_lshrrev_b32 v24, 1, v24")
a.e("v_mul_u32_u24 v25, 43, v24")
a.e("v_add_u32 v26, 43, v25")
a.e("v_lshrrev_b32 v25, 4, v25")
a.e("v_lshrrev_b32 v26, 4, v26")
a.e("s_add_u32 s58, s64, 10")
a.e("v_cmp_gt_u32 s[90:91], s58, v25")
a.e("v_cmp_lt_u32 s[92:93], s64, v26")
a.e("s_and_b64 s[90:91], s[90:91], s[92:93]")
a.e("v_cmp_eq_u32 s[92:93], 15, v24")
a.e("s_or_b64 s[90:91], s[90:91], s[92:93]")
a.e("s_lshl_b32 s61, s56, 7")
a.e(f"s_add_u32 s61, s61, {H_BYTES}")
def HB(i, mi): return 96 + i * 8 + 4 * mi
def AFR(i, j): return 16 + (i & 1) * 16 + 4 * j
def ACC2(j, mi): return 48 + 16 * mi + 4 * j
def HS(i): return f"s{70+i if not DIAG else 8+i}"
def h_soff(i):
    if i < 10:
        a.e("s_add_u32 s58, s64, s65")
        a.e(f"s_lshl_b32 {HS(i)}, s58, 17")
        a.e("s_add_u32 s65, s65, 1")
        a.e("s_cmp_eq_u32 s65, 10")
        a.e("s_cselect_b32 s65, 0, s65")
    else:
        a.e("s_add_u32 s58, s55, 40")
        a.e(f"s_lshl_b32 {HS(i)}, s58, 17")
def h_loads(i):
    for mi in range(2):
        a.vm_op(f"buffer_load_dwordx4 v[{HB(i,mi)}:{HB(i,mi)+3}], v6, s[20:23], {HS(i)} offen offset:{mi*1024} sc1", ("h", i))
def a_addr(i):
    if i < 10:
        a.e("s_lshl_b32 s59, s62, 12")
        a.e("s_add_u32 s62, s62, 1")
        a.e("s_cmp_eq_u32 s62, 10")
        a.e("s_cselect_b32 s62, 0, s62")
        sreg = "s59"
    else: sreg = "s60"
    for j in range(4): a.e(f"v_add_u32 v{8+j}, {sreg}, v{2+j}")
def a_read(i, j):
    for hh in range(2):
        a.lds_op(f"ds_read_b64_tr_b16 v[{AFR(i,j)+2*hh}:{AFR(i,j)+2*hh+1}], v{8+j} offset:{hh*512}", ("a", i, j))
for i in range(11): h_soff(i)
a_addr(0)
a.e("s_waitcnt vmcnt(0)")
a.e("s_barrier")
a.stamp(7)
for j in range(4): a_read(0, j)
a.wait_all_lds()
a.e("s_barrier")
a.e("s_cmp_ge_u32 s54, 4")
a.e("s_cbranch_scc1 L_NOXW")
for q in range(4):
    a.e(f"ds_write_b128 v7, v[{XR+4*q}:{XR+4*q+3}] offset:{q*1024}")
a.e("s_waitcnt lgkmcnt(0)")
a.label("L_NOXW")
a.e("s_barrier")
if optval('dly', 0): a.e(f"s_sleep {optval('dly', 0)}")
a.label("L_POLL")
a.e("buffer_load_dword v12, v13, s[4:7], s61 offen sc1")
a.e("s_add_u32 s3, s3, 1")
a.e(f"s_cmp_gt_u32 s3, {SPIN}")
a.e("s_cbranch_scc1 L_POLLDONE")
a.e("s_waitcnt vmcnt(0)")
a.e("v_cmp_ne_u32 vcc, 1, v12")
a.e("s_and_b64 vcc, vcc, s[90:91]")
a.e("s_cbranch_vccnz L_POLL")
a.label("L_POLLDONE")
a.stamp(8)
for i in range(11): h_loads(i)
for i in range(11):
    if i + 1 < 11: a_addr(i + 1)
    a.wait(vm_tags=[("h", i)])
    if i == 0: a.stamp(9)
    for j in range(4):
        a.wait(lds_tags=[("a", i, j)])
        for mi in range(2):
            cin = "0" if i == 0 else f"v[{ACC2(j,mi)}:{ACC2(j,mi)+3}]"
            a.e(f"v_mfma_f32_16x16x32_bf16 v[{ACC2(j,mi)}:{ACC2(j,mi)+3}], v[{AFR(i,j)}:{AFR(i,j)+3}], v[{HB(i,mi)}:{HB(i,mi)+3}], {cin}")
            if mi == 0 and i + 1 < 11: a_read(i + 1, j)
a.stamp(10)
a.e("s_barrier")
a.e("s_nop 7")
for mi in range(2):
    for j in range(4):
        a.e(f"ds_write_b128 v15, v[{ACC2(j,mi)}:{ACC2(j,mi)+3}] offset:{mi*4096 + j*1024}")
a.e("s_lshl_b32 s58, s55, 12")
a.e("s_lshl_b32 s59, s63, 11")
a.e("s_add_u32 s58, s58, s59")
a.e("v_add_u32 v8, s58, v14")
a.e(f"v_add_u32 v9, {2*BUF}, v8")
a.e("s_lshl_b32 s58, s56, 6")
a.e("s_lshl_b32 s59, s55, 4")
a.e("s_add_u32 s58, s58, s59")
a.e("s_lshl_b32 s58, s58, 10")
a.e("s_lshl_b32 s59, s57, 7")
a.e("s_add_u32 s58, s58, s59")
a.e("s_lshl_b32 s59, s63, 6")
a.e("s_add_u32 s58, s58, s59")
a.e("v_and_b32 v10, 15, v1")
a.e("v_lshlrev_b32 v10, 10, v10")
a.e("v_bfe_u32 v11, v1, 4, 1")
a.e("v_lshl_add_u32 v10, v11, 5, v10")
a.e("v_lshrrev_b32 v11, 5, v1")
a.e("v_lshl_add_u32 v10, v11, 4, v10")
a.wait_all_lds()
a.e("s_barrier")
for src in range(4):
    for jj in range(2):
        r = 96 + 8 * src + 4 * jj
        a.e(f"ds_read_b128 v[{r}:{r+3}], v{8 + (src >> 1)} offset:{(src & 1)*BUF + jj*1024}")
a.e("s_waitcnt lgkmcnt(4)")
for k in range(0, 8, 2): a.e(f"v_pk_add_f32 v[{96+k}:{97+k}], v[{96+k}:{97+k}], v[{104+k}:{105+k}]")
a.e("s_waitcnt lgkmcnt(0)")
for k in range(0, 8, 2): a.e(f"v_pk_add_f32 v[{112+k}:{113+k}], v[{112+k}:{113+k}], v[{120+k}:{121+k}]")
for k in range(0, 8, 2): a.e(f"v_pk_add_f32 v[{96+k}:{97+k}], v[{96+k}:{97+k}], v[{112+k}:{113+k}]")
for k in range(4): a.e(f"v_cvt_pk_bf16_f32 v{16+k}, v{96+2*k}, v{96+2*k+1}")
a.e("s_nop 1")
a.e("v_permlane16_swap_b32 v16, v18")
a.e("v_permlane16_swap_b32 v17, v19")
OUTF = ' sc1' if 'outsc1' in OPT else ' nt' if 'outnt' in OPT else ''
a.e(f"buffer_store_dwordx4 v[16:19], v10, s[28:31], s58 offen{OUTF}")
a.dump_stamps(11)
a.label("L_END")
a.e("s_endpgm")
a.label("L_CODE_END")

HDR = open("standalone__glu_gated_geglu__prompt.s.ref").read().split("; Override")[0]
out = HDR + "; @launch grid=(256,1,1) block=(512,1,1) lds=163840\n"
out += f'.amdgcn_target "amdgcn-amd-amdhsa--gfx950"\n.text\n.globl {KN}\n.p2align 8\n.type {KN},@function\n'
out += f".set CODE_END_OFF, L_CODE_END - {KN} - 1024\n"
out += a.text() + f"""
.section .rodata,"a"
.p2align 6
.amdhsa_kernel {KN}
  .amdhsa_next_free_vgpr 256
  .amdhsa_next_free_sgpr 102
  .amdhsa_accum_offset 256
  .amdhsa_group_segment_fixed_size 0
  .amdhsa_kernarg_size 56
  .amdhsa_user_sgpr_count 2
  .amdhsa_user_sgpr_kernarg_segment_ptr 1
  .amdhsa_system_sgpr_workgroup_id_x 1
.end_amdhsa_kernel
"""
open(sys.argv[1], "w").write(out)
```

```python
import sys, struct
OPT = set(sys.argv[2:])
DIAG = 'diag' in OPT
KN = "standalone__glu_gated_geglu__prompt_kernel"
def f2u(x): return struct.unpack("<I", struct.pack("<f", x))[0]

class Asm:
    def __init__(self):
        self.lines = []; self.lds = []; self.vm = []; self.nst = 0
    def e(self, s): self.lines.append("    " + s)
    def label(self, s): self.lines.append(s + ":")
    def c(self, s): self.lines.append("    ; " + s)
    def reset(self): self.lds = []; self.vm = []
    def lds_op(self, s, tag=None): self.e(s); self.lds.append(tag)
    def vm_op(self, s, tag=None): self.e(s); self.vm.append(tag)
    def _need(self, q, tags):
        last = -1
        for i, t in enumerate(q):
            if t in tags: last = i
        return last
    def wait(self, lds_tags=(), vm_tags=()):
        parts = []
        if vm_tags:
            last = self._need(self.vm, vm_tags)
            if last >= 0:
                n = len(self.vm) - 1 - last
                assert n <= 63, n
                parts.append(f"vmcnt({n})"); self.vm = self.vm[last + 1:]
        if lds_tags:
            last = self._need(self.lds, lds_tags)
            if last >= 0:
                n = min(len(self.lds) - 1 - last, 15)
                parts.append(f"lgkmcnt({n})")
                self.lds = self.lds[len(self.lds) - n:] if n else []
        if parts: self.e("s_waitcnt " + " ".join(parts))
    def wait_all_lds(self): self.e("s_waitcnt lgkmcnt(0)"); self.lds = []
    def wait_all_vm(self): self.e("s_waitcnt vmcnt(0)"); self.vm = []
    def text(self): return "\n".join(self.lines)
    def stamp(self, k):
        if not DIAG: return
        op = "s_memtime" if 'clk' in OPT else "s_memrealtime"
        self.e(f"{op} s[{68+2*k}:{69+2*k}]")
        self.e("s_waitcnt lgkmcnt(0)"); self.lds = []
    def dump_stamps(self, n):
        if not DIAG: return
        self.e("s_waitcnt vmcnt(0)")
        self.e("s_memrealtime s[66:67]")
        self.e("s_waitcnt lgkmcnt(0)")
        self.e("s_mov_b32 s22, 0x10000000")
        self.e("s_lshl_b32 s64, s2, 4"); self.e("s_add_u32 s64, s64, s54"); self.e("s_lshl_b32 s64, s64, 7")
        self.e("s_add_u32 s64, s64, 0x4000000")
        self.e("v_mov_b32 v1, 0")
        for k in range(n):
            self.e(f"v_mov_b32 v2, s{68+2*k}")
            self.e(f"buffer_store_dword v2, v1, s[20:23], s64 offen offset:{4*k}")
        self.e("v_mov_b32 v3, s66")
        self.e(f"buffer_store_dword v3, v1, s[20:23], s64 offen offset:{4*n}")
        self.e("v_mov_b32 v3, s3")
        self.e(f"buffer_store_dword v3, v1, s[20:23], s64 offen offset:120")

H_BYTES = 43 * 128 * 1024
C1 = -2.0 * 1.4426950408889634 * 0.7978845608028654
C2 = C1 * 0.044715
BUF = 40960
SPIN = 0x40000
HOFF = [int(o[5:]) for o in OPT if o.startswith('hoff=')]
HOFF = (HOFF[0] << 20) if HOFF else 0
def srd(a, d, lo, nbytes):
    if lo == 48 and HOFF:
        a.e(f"s_add_u32 s{d}, s{lo}, {HOFF}")
        a.e(f"s_addc_u32 s{d+1}, s{lo+1}, 0")
        a.e(f"s_and_b32 s{d+1}, s{d+1}, 0xffff")
        a.e(f"s_mov_b32 s{d+2}, {nbytes}")
        a.e(f"s_mov_b32 s{d+3}, 0x20000")
        return
    a.e(f"s_mov_b32 s{d}, s{lo}")
    a.e(f"s_and_b32 s{d+1}, s{lo+1}, 0xffff")
    a.e(f"s_mov_b32 s{d+2}, {nbytes}")
    a.e(f"s_mov_b32 s{d+3}, 0x20000")

a = Asm()
a.label(KN)
a.e("s_cmp_ge_u32 s2, 256")
a.e("s_cbranch_scc1 L_END")
a.e("s_load_dwordx8 s[36:43], s[0:1], 0")
a.e("s_load_dwordx4 s[44:47], s[0:1], 32")
a.e("s_load_dwordx2 s[48:49], s[0:1], 48")
if DIAG:
    a.e("s_memrealtime s[68:69]")
    for k in range(1, 15): a.e(f"s_mov_b32 s{68+2*k}, 0")
a.e("v_and_b32 v1, 63, v0")
a.e("v_lshrrev_b32 v2, 6, v0")
a.e("s_and_b32 s58, s2, 7")
a.e("v_readfirstlane_b32 s54, v2")
a.e("s_lshr_b32 s59, s2, 3")
a.e("s_and_b32 s50, s58, 1")
a.e("s_lshl_b32 s50, s50, 3")
a.e("s_and_b32 s57, s59, 7")
a.e("s_add_u32 s50, s50, s57")
a.e("s_lshr_b32 s51, s58, 1")
a.e("s_lshl_b32 s51, s51, 2")
a.e("s_lshr_b32 s61, s59, 3")
a.e("s_add_u32 s51, s51, s61")
a.e("s_mul_i32 s52, s51, 43")
a.e("s_add_u32 s53, s52, 43")
a.e("s_lshr_b32 s52, s52, 4")
a.e("s_lshr_b32 s53, s53, 4")
a.e("s_sub_u32 s53, s53, s52")
a.e("s_lshl_b32 s56, s58, 2")
a.e("s_add_u32 s56, s56, s61")
a.e("s_and_b32 s55, s54, 3")
a.e("s_mov_b32 s100, s57")
if 'nt2shift' in OPT:
    a.e("s_add_u32 s57, s57, 2")
    a.e("s_and_b32 s57, s57, 7")
a.e("s_mov_b32 s98, s56")
a.e("s_mov_b32 s3, 0")
a.e("s_cmp_ge_u32 s54, 4")
a.e("s_cbranch_scc1 L_COMPUTE")

a.c("LOADER")
a.e("s_lshl_b32 s60, s61, 1")
a.e("s_add_u32 s60, s60, s100")
a.e("v_lshrrev_b32 v20, 3, v1")
a.e("v_lshrrev_b32 v21, 4, v1")
a.e("v_and_b32 v22, 7, v1")
a.e("v_xor_b32 v24, v22, v21")
a.e("v_xor_b32 v23, 4, v24")
a.e("s_lshl_b32 s58, s50, 7")
a.e("s_lshl_b32 s59, s55, 5")
a.e("s_add_u32 s58, s58, s59")
a.e("s_lshl_b32 s58, s58, 10")
a.e("v_lshlrev_b32 v20, 10, v20")
a.e("v_add_u32 v25, s58, v20")
a.e("v_lshl_add_u32 v2, v24, 4, v25")
a.e("v_lshl_add_u32 v3, v23, 4, v25")
a.e("v_add_u32 v3, 8192, v3")
a.e("v_add_u32 v4, 16384, v2")
a.e("v_add_u32 v5, 16384, v3")
a.e("s_mul_i32 s58, s55, 44032")
a.e("s_lshl_b32 s59, s52, 6")
a.e("s_add_u32 s58, s58, s59")
a.e("s_movk_i32 s59, 2752")
for i in range(3):
    a.e(f"v_add_u32 v26, {64*i}, v1")
    a.e("v_mul_u32_u24 v27, 171, v26")
    a.e("v_lshrrev_b32 v27, 11, v27")
    a.e("v_mul_u32_u24 v28, 12, v27")
    a.e("v_sub_u32 v28, v26, v28")
    a.e("v_lshrrev_b32 v29, 2, v27")
    a.e("v_and_b32 v29, 2, v29")
    a.e("v_xor_b32 v28, v28, v29")
    a.e("v_mul_u32_u24 v27, s59, v27")
    a.e("v_lshl_add_u32 v27, v28, 4, v27")
    a.e(f"v_add_u32 v{6+i}, s58, v27")
a.e("s_lshl_b32 s62, s55, 12")
a.e("s_mul_i32 s63, s55, 3072")
a.e("s_add_u32 s63, s63, 16384")
a.e("s_waitcnt lgkmcnt(0)")
srd(a, 8, 36, 2048 * 1024)
srd(a, 12, 38, 512 * 2752)
srd(a, 16, 40, 512 * 2752)

def optval(name, d):
    v = [o[len(name)+1:] for o in OPT if o.startswith(name + '=')]
    return int(v[0]) if v else d
XR = 80
a.e("s_mov_b32 s66, 0")
a.e("s_mov_b32 s67, 0")
a.label("L_LD")
a.e("s_cmp_lt_u32 s66, 2")
a.e("s_cbranch_scc1 L_LD_ISSUE")
a.e("s_waitcnt vmcnt(10)")
a.e("s_barrier")
a.label("L_LD_ISSUE")
a.e("s_add_u32 s59, s60, s66")
a.e("s_and_b32 s59, s59, 7")
a.e("s_lshl_b32 s58, s59, 7")
a.e("s_mul_i32 s59, s59, 176128")
a.e("s_add_u32 s64, s62, s67")
a.e("s_add_u32 s65, s63, s67")
for t in range(4):
    a.e(f"s_add_u32 m0, s64, {t*1024}" if t else "s_mov_b32 m0, s64")
    a.e("s_nop 0")
    a.e(f"buffer_load_dwordx4 v{2+t}, s[8:11], s58 offen lds")
for gu in range(2):
    for i in range(3):
        a.e(f"s_add_u32 m0, s65, {gu*12288 + i*1024}" if (gu or i) else "s_mov_b32 m0, s65")
        a.e("s_nop 0")
        a.e(f"buffer_load_dwordx4 v{6+i}, s[{12+4*gu}:{15+4*gu}], s59 offen lds")
a.e(f"s_add_u32 s67, s67, {BUF}")
a.e(f"s_cmp_eq_u32 s67, {4*BUF}")
a.e("s_cselect_b32 s67, 0, s67")
a.e("s_add_u32 s66, s66, 1")
a.e("s_cmp_lt_u32 s66, 8")
a.e("s_cbranch_scc1 L_LD")
a.e("v_and_b32 v21, 1, v21")
a.e("v_lshlrev_b32 v21, 1, v21")
a.e("v_xor_b32 v22, v22, v21")
a.e("s_lshl_b32 s58, s57, 7")
a.e("v_add_u32 v20, s58, v20")
a.e("v_lshl_add_u32 v9, v22, 4, v20")
a.e("v_xor_b32 v22, 4, v22")
a.e("v_lshl_add_u32 v10, v22, 4, v20")
srd(a, 24, 42, 1376 * 1024)
srd(a, 20, 48, H_BYTES)
srd(a, 28, 44, 2048 * 1024)
srd(a, 32, 46, 256)
srd(a, 4, 48, H_BYTES + 4096)
a.e("s_mul_i32 s64, s55, 10240")
a.e("s_mul_i32 s65, s55, 81920")
a.e("s_lshr_b32 s101, s2, 3")
a.e("s_lshl_b32 s101, s101, 2")
a.e("s_add_u32 s101, s101, s55")
a.e("s_mul_i32 s101, s101, 11008")
a.e("v_lshlrev_b32 v30, 7, v1")
a.e("v_min_u32 v31, 21, v1")
a.e("v_lshlrev_b32 v31, 7, v31")
a.e("v_add_u32 v31, 8192, v31")
a.e("s_lshl_b32 s58, s50, 4")
a.e("s_lshr_b32 s59, s56, 1")
a.e("s_lshl_b32 s59, s59, 4")
a.e("v_mov_b32 v17, s58")
a.e("v_mov_b32 v18, s59")
a.e("v_cmp_gt_u32 vcc, 32, v1")
a.e("s_nop 1")
a.e("v_cndmask_b32 v17, v18, v17, vcc")
a.e("s_waitcnt vmcnt(10)")
a.e("s_barrier")
a.e("buffer_load_dword v20, v17, s[32:35], 0 offen sc1")
a.e("buffer_load_dword v32, v30, s[24:27], s101 offen")
a.e("s_waitcnt vmcnt(2)")
a.e("s_barrier")
a.e("buffer_load_dword v33, v31, s[24:27], s101 offen")
a.e("s_waitcnt vmcnt(2)")
a.e("v_cmp_eq_u32 vcc, 0, v20")
a.e("s_cbranch_vccz L_POLLC_DONE")
a.label("L_POLLC")
a.e("buffer_load_dword v20, v17, s[32:35], 0 offen sc1")
a.e("s_add_u32 s3, s3, 1")
a.e(f"s_cmp_gt_u32 s3, {SPIN}")
a.e("s_cbranch_scc1 L_POLLC_DONE")
a.e("s_waitcnt vmcnt(0)")
a.e("v_cmp_eq_u32 vcc, 0, v20")
a.e("s_cbranch_vccnz L_POLLC")
a.label("L_POLLC_DONE")
a.stamp(4)
a.e("s_barrier")
a.stamp(5)
a.e("s_mov_b32 s66, 0")
a.label("L_LW")
a.e("s_add_u32 s58, s98, s66")
a.e("s_and_b32 s58, s58, 3")
a.e("s_mul_i32 s58, s58, 327680")
a.e("s_add_u32 s58, s58, s65")
for i in range(10):
    a.e(f"s_add_u32 m0, s64, {i*1024}" if i else "s_mov_b32 m0, s64")
    if i: a.e("s_add_u32 s58, s58, 8192")
    else: a.e("s_nop 0")
    a.e(f"buffer_load_dwordx4 v{9 + (i & 1)}, s[24:27], s58 offen lds")
a.e(f"s_add_u32 s64, s64, {BUF}")
a.e("s_add_u32 s66, s66, 1")
a.e("s_cmp_lt_u32 s66, 4")
a.e("s_cbranch_scc1 L_LW")
a.e("s_add_u32 s58, s55, 40")
a.e("s_lshl_b32 s58, s58, 15")
for i in range(4):
    a.e(f"buffer_load_dwordx4 v[{XR+4*i}:{XR+4*i+3}], v{9 + (i & 1)}, s[24:27], s58 offen")
    if i < 3: a.e("s_add_u32 s58, s58, 8192")
a.stamp(6)
a.e("s_branch L_G2")

a.reset()
a.e(".p2align 6")
a.label("L_COMPUTE")
a.e("s_and_b32 s62, s55, 1")
a.e("s_lshr_b32 s63, s55, 1")
a.e("v_and_b32 v20, 15, v1")
a.e("v_lshrrev_b32 v21, 4, v1")
a.e("v_bfe_u32 v22, v20, 1, 3")
a.e("v_xor_b32 v22, v22, v21")
a.e("v_lshlrev_b32 v22, 4, v22")
a.e("v_lshl_add_u32 v22, v20, 7, v22")
a.e("s_lshl_b32 s58, s62, 13")
a.e("v_add_u32 v2, s58, v22")
a.e("v_xor_b32 v3, 64, v2")
a.e("v_mov_b32 v192, v2")
a.e("v_mov_b32 v193, v3")
a.e("v_bfe_u32 v22, v1, 2, 2")
a.e("v_lshl_add_u32 v22, v21, 3, v22")
a.e("v_mul_u32_u24 v22, 192, v22")
a.e("v_and_b32 v23, 3, v1")
a.e("v_lshl_add_u32 v22, v23, 3, v22")
a.e("v_add_u32 v22, 16384, v22")
a.e("v_and_b32 v23, 1, v21")
a.e("s_mul_i32 s64, s63, s53")
for ft in range(3):
    a.e(f"s_add_u32 s58, s64, {ft}")
    a.e("v_xor_b32 v24, s58, v23")
    a.e(f"v_lshl_add_u32 v{6+ft}, v24, 5, v22")
    a.e(f"v_mov_b32 v{194+ft}, v{6+ft}")
a.e("v_lshlrev_b32 v24, 10, v23")
a.e("v_lshrrev_b32 v25, 1, v21")
a.e("v_lshl_add_u32 v24, v25, 8, v24")
a.e("v_lshl_add_u32 v24, v20, 4, v24")
a.e("s_lshl_b32 s58, s50, 3")
a.e("s_lshl_b32 s59, s62, 2")
a.e("s_add_u32 s58, s58, s59")
a.e("s_lshl_b32 s58, s58, 10")
a.e("v_add_u32 v12, s58, v24")
a.e(f"v_mov_b32 v14, 0x{f2u(C1):08x}")
a.e(f"v_mov_b32 v15, 0x{f2u(C1):08x}")
a.e(f"s_mov_b32 s90, 0x{f2u(C2):08x}")
a.e(f"s_mov_b32 s91, 0x{f2u(C2):08x}")
a.e("s_mov_b32 s92, 1.0")
a.e("s_mov_b32 s93, 1.0")
a.e("s_lshl_b32 s60, s52, 1")
a.e("s_add_u32 s60, s60, s64")
for ft in range(3):
    a.e(f"s_add_u32 s58, s60, {ft}")
    a.e("s_lshr_b32 s59, s58, 1")
    a.e("s_lshl_b32 s59, s59, 17")
    a.e("s_and_b32 s58, s58, 1")
    a.e("s_lshl_b32 s58, s58, 9")
    a.e(f"s_add_u32 s{94+ft}, s58, s59")
a.e("s_lshl_b32 s61, s50, 1")
a.e("s_add_u32 s61, s61, s62")
a.e("s_lshl_b32 s61, s61, 7")
a.e("s_lshl_b32 s58, s51, 1")
a.e("s_add_u32 s58, s58, s63")
a.e("s_lshl_b32 s58, s58, 2")
a.e("s_add_u32 s61, s61, s58")
a.e(f"s_add_u32 s61, s61, {H_BYTES}")
a.e("v_mov_b32 v13, 0")
a.e("s_waitcnt lgkmcnt(0)")
srd(a, 20, 48, H_BYTES)
srd(a, 28, 44, 2048 * 1024)
srd(a, 32, 46, 256)
srd(a, 4, 48, H_BYTES + 4096)
if 'mallpf' in OPT:
    a.e("s_cmp_lg_u32 s54, 5")
    a.e("s_cbranch_scc1 L_NOMPF")
    srd(a, 24, 42, 1376 * 1024)
    a.e("s_mul_i32 s58, s2, 5504")
    a.e("v_min_u32 v24, 42, v1")
    a.e("v_lshlrev_b32 v24, 7, v24")
    a.e("buffer_load_dword v200, v24, s[24:27], s58 offen")
    a.label("L_NOMPF")
if 'tlbpf' in OPT:
    SH = optval('tlbsh', 17)
    a.e("s_cmp_lg_u32 s54, 6")
    a.e("s_cbranch_scc1 L_NOTLB")
    srd(a, 24, 42, 1376 * 1024)
    a.e(f"v_lshlrev_b32 v24, {SH}, v1")
    a.e("buffer_load_dword v200, v24, s[4:7], 0 offen")
    a.e("buffer_load_dword v201, v24, s[24:27], 0 offen")
    a.e("buffer_load_dword v202, v24, s[28:31], 0 offen")
    a.label("L_NOTLB")
a.e("s_lshl_b32 s97, s51, 3")
a.e("s_add_u32 s97, s97, s54")
a.e("s_cmp_lg_u32 s97, 4")
a.e("s_cbranch_scc1 L_NOCLR")
a.e("v_lshlrev_b32 v24, 2, v1")
a.e("buffer_store_dword v13, v24, s[4:7], s61 offen sc1")
a.label("L_NOCLR")
if 'noprio' not in OPT: a.e("s_setprio 3")

def WF(n, j): return 16 + 24 * (n & 1) + 4 * j
def XF(n, mi): return 64 + 16 * (n & 1) + 4 * mi
def ACC(j, mi): return 96 + 16 * j + 4 * mi
def read_x(n, mis):
    s2 = n & 1
    for mi in mis:
        a.lds_op(f"ds_read_b128 v[{XF(n,mi)}:{XF(n,mi)+3}], v{2 + s2} offset:{mi * 2048}", ("x", n, mi))
def read_w(n, j):
    s2 = n & 1
    ft, gu = j >> 1, j & 1
    for h in range(2):
        off = gu * 12288 + s2 * 6144 + h * 768
        a.lds_op(f"ds_read_b64_tr_b16 v[{WF(n,j)+2*h}:{WF(n,j)+2*h+1}], v{6 + ft} offset:{off}", ("w", n, j))
for r in range(96, 192): a.e(f"v_mov_b32 v{r}, 0")
a.e("s_mov_b32 s66, 0")
a.e("s_mov_b32 s67, 0")
a.e("s_barrier")
a.stamp(1)
read_w(0, 0)
read_x(0, range(4))
for j in range(1, 6): read_w(0, j)
BJ = 16
a.e(".p2align 3")
a.label("L_MAIN")
for n in range(2):
    reads = [("w", 0), ("x", [0, 1]), ("x", [2, 3])] + [("w", j) for j in range(1, 6)]
    slots = [BJ + k for k in range(8)] if n == 1 else [0, 2, 4, 6, 8, 12, 16, 20]
    for j in range(6):
        for mi in range(4):
            slot = 4 * j + mi
            if n == 1 and slot == 8:
                a.e(f"s_add_u32 s67, s67, {BUF}")
                a.e(f"s_cmp_eq_u32 s67, {4*BUF}")
                a.e("s_cselect_b32 s67, 0, s67")
            if n == 1 and 9 <= slot <= 13:
                k = slot - 9
                a.e(f"v_add_u32 v{[2,3,6,7,8][k]}, s67, v{192+k}")
            if n == 1 and slot == BJ:
                a.wait_all_lds()
                a.e("s_barrier")
                a.e("s_cmp_lg_u32 s97, 4")
                a.e("s_cbranch_scc0 L_CNT")
                a.label("L_CNT_RET")
            if mi == 0 or j == 0:
                a.wait(lds_tags=[("w", n, j), ("x", n, mi)])
            a.e(f"v_mfma_f32_16x16x32_bf16 v[{ACC(j,mi)}:{ACC(j,mi)+3}], v[{WF(n,j)}:{WF(n,j)+3}], v[{XF(n,mi)}:{XF(n,mi)+3}], v[{ACC(j,mi)}:{ACC(j,mi)+3}]")
            for k, sl in enumerate(slots):
                if sl == slot:
                    kind, arg = reads[k]
                    if kind == "w": read_w((n + 1) & 1, arg)
                    else: read_x((n + 1) & 1, arg)
a.e("s_add_u32 s66, s66, 1")
a.e("s_cmp_lt_u32 s66, 8")
a.e("s_cbranch_scc1 L_MAIN")
a.wait_all_lds()
a.e("s_nop 7")
a.stamp(5)
T = 16
for ft in range(3):
    if ft == 2:
        a.e("s_cmp_lt_u32 s53, 3")
        a.e("s_cbranch_scc1 L_EPI_DONE")
    for pr in range(2):
        G, U = ACC(2 * ft, 2 * pr), ACC(2 * ft + 1, 2 * pr)
        t0 = T + 16 * pr
        p0 = t0 + 8
        ps = range(0, 8, 2)
        if 'nopk' not in OPT:
            for r in ps: a.e(f"v_pk_mul_f32 v[{t0+r}:{t0+r+1}], v[{G+r}:{G+r+1}], v[{G+r}:{G+r+1}]")
            for r in ps: a.e(f"v_pk_fma_f32 v[{t0+r}:{t0+r+1}], v[{t0+r}:{t0+r+1}], s[90:91], v[14:15]")
            for r in ps: a.e(f"v_pk_mul_f32 v[{t0+r}:{t0+r+1}], v[{t0+r}:{t0+r+1}], v[{G+r}:{G+r+1}]")
            for r in range(8): a.e(f"v_exp_f32 v{t0+r}, v{t0+r}")
            for r in ps: a.e(f"v_pk_mul_f32 v[{p0+r}:{p0+r+1}], v[{G+r}:{G+r+1}], v[{U+r}:{U+r+1}]")
            for r in ps: a.e(f"v_pk_add_f32 v[{t0+r}:{t0+r+1}], v[{t0+r}:{t0+r+1}], s[92:93]")
            for r in range(8): a.e(f"v_rcp_f32 v{t0+r}, v{t0+r}")
            a.e("s_nop 0")
            for r in ps: a.e(f"v_pk_mul_f32 v[{t0+r}:{t0+r+1}], v[{t0+r}:{t0+r+1}], v[{p0+r}:{p0+r+1}]")
        else:
            rs = range(8)
            for r in rs: a.e(f"v_mul_f32 v{t0+r}, v{G+r}, v{G+r}")
            for r in rs: a.e(f"v_fmamk_f32 v{t0+r}, v{t0+r}, 0x{f2u(C2):08x}, v14")
            for r in rs: a.e(f"v_mul_f32 v{t0+r}, v{t0+r}, v{G+r}")
            for r in rs: a.e(f"v_exp_f32 v{t0+r}, v{t0+r}")
            for r in rs: a.e(f"v_mul_f32 v{p0+r}, v{G+r}, v{U+r}")
            for r in rs: a.e(f"v_add_f32 v{t0+r}, 1.0, v{t0+r}")
            for r in rs: a.e(f"v_rcp_f32 v{t0+r}, v{t0+r}")
            a.e("s_nop 0")
            for r in rs: a.e(f"v_mul_f32 v{t0+r}, v{t0+r}, v{p0+r}")
        O = 64 + 8 * ft + 4 * pr
        for i in range(4): a.e(f"v_cvt_pk_bf16_f32 v{O+i}, v{t0+2*i}, v{t0+2*i+1}")
        a.e("s_nop 1")
        a.e(f"v_permlane16_swap_b32 v{O}, v{O+2}")
        a.e(f"v_permlane16_swap_b32 v{O+1}, v{O+3}")
        a.e(f"buffer_store_dwordx4 v[{O}:{O+3}], v12, s[20:23], s{94+ft} offen offset:{pr*2048} sc1")
a.label("L_EPI_DONE")
a.stamp(6)
a.e("s_waitcnt vmcnt(0)")
a.e("v_mov_b32 v88, 1")
a.e("s_mov_b64 exec, 1")
a.e("buffer_store_dword v88, v13, s[4:7], s61 offen sc1")
a.e("s_mov_b64 exec, -1")
a.e("s_setprio 0")

a.reset()
a.label("L_G2")
a.e("s_lshr_b32 s63, s54, 2")
a.e("v_lshrrev_b32 v21, 4, v1")
a.e("v_and_b32 v23, 1, v21")
a.e("v_bfe_u32 v22, v1, 2, 2")
a.e("v_lshl_add_u32 v22, v21, 3, v22")
a.e("v_lshlrev_b32 v22, 7, v22")
a.e("v_and_b32 v24, 1, v1")
a.e("v_lshl_add_u32 v22, v24, 3, v22")
a.e("v_bfe_u32 v24, v1, 1, 1")
a.e("v_lshl_add_u32 v22, v24, 4, v22")
a.e(f"s_mul_i32 s58, s55, {BUF}")
a.e("v_add_u32 v22, s58, v22")
a.e("v_bfe_u32 v24, v1, 3, 1")
a.e("v_lshl_add_u32 v24, v23, 1, v24")
a.e("v_lshlrev_b32 v24, 1, v24")
for j in range(4):
    a.e(f"v_xor_b32 v25, {2*j}, v24")
    a.e(f"v_lshl_add_u32 v{2+j}, v25, 4, v22")
a.e("v_lshlrev_b32 v14, 4, v1")
a.e("s_mov_b32 s65, s57")
a.e("s_mov_b32 s62, s65")
a.e("s_lshl_b32 s60, s65, 12")
a.e("s_add_u32 s58, s58, s60")
a.e("v_add_u32 v7, s58, v14")
a.e("s_add_u32 s64, s55, s98")
a.e("s_and_b32 s64, s64, 3")
a.e("s_mul_i32 s64, s64, 10")
a.e(f"s_mul_i32 s58, s55, {BUF}")
a.e("s_lshl_b32 s59, s63, 13")
a.e("s_add_u32 s58, s58, s59")
a.e("v_add_u32 v15, s58, v14")
a.e("s_lshl_b32 s58, s56, 12")
a.e("s_lshl_b32 s59, s63, 11")
a.e("s_add_u32 s58, s58, s59")
a.e("v_add_u32 v6, s58, v14")
a.e("v_and_b32 v24, 31, v1")
a.e("v_lshlrev_b32 v13, 2, v24")
a.e("v_lshrrev_b32 v24, 1, v24")
a.e("v_mul_u32_u24 v25, 43, v24")
a.e("v_add_u32 v26, 43, v25")
a.e("v_lshrrev_b32 v25, 4, v25")
a.e("v_lshrrev_b32 v26, 4, v26")
a.e("s_add_u32 s58, s64, 10")
a.e("v_cmp_gt_u32 s[90:91], s58, v25")
a.e("v_cmp_lt_u32 s[92:93], s64, v26")
a.e("s_and_b64 s[90:91], s[90:91], s[92:93]")
a.e("v_cmp_eq_u32 s[92:93], 15, v24")
a.e("s_or_b64 s[90:91], s[90:91], s[92:93]")
a.e("s_lshl_b32 s61, s56, 7")
a.e(f"s_add_u32 s61, s61, {H_BYTES}")
def HB(i, mi): return 96 + i * 8 + 4 * mi
def AFR(i, j): return 16 + (i & 1) * 16 + 4 * j
def ACC2(j, mi): return 48 + 16 * mi + 4 * j
def HS(i): return f"s{70+i if not DIAG else 8+i}"
def h_soff(i):
    if i < 10:
        a.e("s_add_u32 s58, s64, s65")
        a.e(f"s_lshl_b32 {HS(i)}, s58, 17")
        a.e("s_add_u32 s65, s65, 1")
        a.e("s_cmp_eq_u32 s65, 10")
        a.e("s_cselect_b32 s65, 0, s65")
    else:
        a.e("s_add_u32 s58, s55, 40")
        a.e(f"s_lshl_b32 {HS(i)}, s58, 17")
def h_loads(i):
    for mi in range(2):
        a.vm_op(f"buffer_load_dwordx4 v[{HB(i,mi)}:{HB(i,mi)+3}], v6, s[20:23], {HS(i)} offen offset:{mi*1024} sc1", ("h", i))
def a_addr(i):
    if i < 10:
        a.e("s_lshl_b32 s59, s62, 12")
        a.e("s_add_u32 s62, s62, 1")
        a.e("s_cmp_eq_u32 s62, 10")
        a.e("s_cselect_b32 s62, 0, s62")
        sreg = "s59"
    else: sreg = "s60"
    for j in range(4): a.e(f"v_add_u32 v{8+j}, {sreg}, v{2+j}")
def a_read(i, j):
    for hh in range(2):
        a.lds_op(f"ds_read_b64_tr_b16 v[{AFR(i,j)+2*hh}:{AFR(i,j)+2*hh+1}], v{8+j} offset:{hh*512}", ("a", i, j))
for i in range(11): h_soff(i)
a_addr(0)
a.e("s_waitcnt vmcnt(0)")
a.e("s_barrier")
a.stamp(7)
for j in range(4): a_read(0, j)
a.wait_all_lds()
a.e("s_barrier")
a.e("s_cmp_ge_u32 s54, 4")
a.e("s_cbranch_scc1 L_NOXW")
for q in range(4):
    a.e(f"ds_write_b128 v7, v[{XR+4*q}:{XR+4*q+3}] offset:{q*1024}")
a.e("s_waitcnt lgkmcnt(0)")
a.label("L_NOXW")
a.e("s_barrier")
if optval('dly', 0): a.e(f"s_sleep {optval('dly', 0)}")
a.label("L_POLL")
a.e("buffer_load_dword v12, v13, s[4:7], s61 offen sc1")
a.e("s_add_u32 s3, s3, 1")
a.e(f"s_cmp_gt_u32 s3, {SPIN}")
a.e("s_cbranch_scc1 L_POLLDONE")
a.e("s_waitcnt vmcnt(0)")
a.e("v_cmp_ne_u32 vcc, 1, v12")
a.e("s_and_b64 vcc, vcc, s[90:91]")
a.e("s_cbranch_vccnz L_POLL")
a.label("L_POLLDONE")
a.stamp(8)
for i in range(11): h_loads(i)
for i in range(11):
    if i + 1 < 11: a_addr(i + 1)
    a.wait(vm_tags=[("h", i)])
    if i == 0: a.stamp(9)
    for j in range(4):
        a.wait(lds_tags=[("a", i, j)])
        for mi in range(2):
            cin = "0" if i == 0 else f"v[{ACC2(j,mi)}:{ACC2(j,mi)+3}]"
            a.e(f"v_mfma_f32_16x16x32_bf16 v[{ACC2(j,mi)}:{ACC2(j,mi)+3}], v[{AFR(i,j)}:{AFR(i,j)+3}], v[{HB(i,mi)}:{HB(i,mi)+3}], {cin}")
            if mi == 0 and i + 1 < 11: a_read(i + 1, j)
a.stamp(10)
a.e("s_barrier")
a.e("s_nop 7")
for mi in range(2):
    for j in range(4):
        a.e(f"ds_write_b128 v15, v[{ACC2(j,mi)}:{ACC2(j,mi)+3}] offset:{mi*4096 + j*1024}")
a.e("s_lshl_b32 s58, s55, 12")
a.e("s_lshl_b32 s59, s63, 11")
a.e("s_add_u32 s58, s58, s59")
a.e("v_add_u32 v8, s58, v14")
a.e(f"v_add_u32 v9, {2*BUF}, v8")
a.e("s_lshl_b32 s58, s56, 6")
a.e("s_lshl_b32 s59, s55, 4")
a.e("s_add_u32 s58, s58, s59")
a.e("s_lshl_b32 s58, s58, 10")
a.e("s_lshl_b32 s59, s57, 7")
a.e("s_add_u32 s58, s58, s59")
a.e("s_lshl_b32 s59, s63, 6")
a.e("s_add_u32 s58, s58, s59")
a.e("v_and_b32 v10, 15, v1")
a.e("v_lshlrev_b32 v10, 10, v10")
a.e("v_bfe_u32 v11, v1, 4, 1")
a.e("v_lshl_add_u32 v10, v11, 5, v10")
a.e("v_lshrrev_b32 v11, 5, v1")
a.e("v_lshl_add_u32 v10, v11, 4, v10")
a.wait_all_lds()
a.e("s_barrier")
for src in range(4):
    for jj in range(2):
        r = 96 + 8 * src + 4 * jj
        a.e(f"ds_read_b128 v[{r}:{r+3}], v{8 + (src >> 1)} offset:{(src & 1)*BUF + jj*1024}")
a.e("s_waitcnt lgkmcnt(4)")
for k in range(0, 8, 2): a.e(f"v_pk_add_f32 v[{96+k}:{97+k}], v[{96+k}:{97+k}], v[{104+k}:{105+k}]")
a.e("s_waitcnt lgkmcnt(0)")
for k in range(0, 8, 2): a.e(f"v_pk_add_f32 v[{112+k}:{113+k}], v[{112+k}:{113+k}], v[{120+k}:{121+k}]")
for k in range(0, 8, 2): a.e(f"v_pk_add_f32 v[{96+k}:{97+k}], v[{96+k}:{97+k}], v[{112+k}:{113+k}]")
for k in range(4): a.e(f"v_cvt_pk_bf16_f32 v{16+k}, v{96+2*k}, v{96+2*k+1}")
a.e("s_nop 1")
a.e("v_permlane16_swap_b32 v16, v18")
a.e("v_permlane16_swap_b32 v17, v19")
OUTF = ' sc1' if 'outsc1' in OPT else ' nt' if 'outnt' in OPT else ''
a.e(f"buffer_store_dwordx4 v[16:19], v10, s[28:31], s58 offen{OUTF}")
a.dump_stamps(11)
a.label("L_END")
a.e("s_endpgm")
a.label("L_CNT")
a.e("s_mov_b32 s97, 0")
a.e("v_mov_b32 v197, 1")
a.e("s_lshl_b32 s58, s50, 4")
a.e("s_waitcnt vmcnt(0)")
a.e("s_mov_b64 exec, 1")
a.e("buffer_store_dword v197, v13, s[32:35], s58 offen sc1")
a.e("s_mov_b64 exec, -1")
a.e("s_branch L_CNT_RET")
a.label("L_CODE_END")

HDR = open("standalone__glu_gated_geglu__prompt.s.ref").read().split("; Override")[0]
out = HDR + "; @launch grid=(256,1,1) block=(512,1,1) lds=163840\n"
out += f'.amdgcn_target "amdgcn-amd-amdhsa--gfx950"\n.text\n.globl {KN}\n.p2align 8\n.type {KN},@function\n'
out += f".set CODE_END_OFF, L_CODE_END - {KN} - 1024\n"
out += a.text() + f"""
.section .rodata,"a"
.p2align 6
.amdhsa_kernel {KN}
  .amdhsa_next_free_vgpr 256
  .amdhsa_next_free_sgpr 102
  .amdhsa_accum_offset 256
  .amdhsa_group_segment_fixed_size 0
  .amdhsa_kernarg_size 56
  .amdhsa_user_sgpr_count 2
  .amdhsa_user_sgpr_kernarg_segment_ptr 1
  .amdhsa_system_sgpr_workgroup_id_x 1
.end_amdhsa_kernel
"""
open(sys.argv[1], "w").write(out)
```

```python
import sys, struct
OPT = set(sys.argv[2:])
DIAG = 'diag' in OPT
KN = "standalone__glu_gated_geglu__prompt_kernel"
def f2u(x): return struct.unpack("<I", struct.pack("<f", x))[0]

class Asm:
    def __init__(self):
        self.lines = []; self.lds = []; self.vm = []; self.nst = 0
    def e(self, s): self.lines.append("    " + s)
    def label(self, s): self.lines.append(s + ":")
    def c(self, s): self.lines.append("    ; " + s)
    def reset(self): self.lds = []; self.vm = []
    def lds_op(self, s, tag=None): self.e(s); self.lds.append(tag)
    def vm_op(self, s, tag=None): self.e(s); self.vm.append(tag)
    def _need(self, q, tags):
        last = -1
        for i, t in enumerate(q):
            if t in tags: last = i
        return last
    def wait(self, lds_tags=(), vm_tags=()):
        parts = []
        if vm_tags:
            last = self._need(self.vm, vm_tags)
            if last >= 0:
                n = len(self.vm) - 1 - last
                assert n <= 63, n
                parts.append(f"vmcnt({n})"); self.vm = self.vm[last + 1:]
        if lds_tags:
            last = self._need(self.lds, lds_tags)
            if last >= 0:
                n = min(len(self.lds) - 1 - last, 15)
                parts.append(f"lgkmcnt({n})")
                self.lds = self.lds[len(self.lds) - n:] if n else []
        if parts: self.e("s_waitcnt " + " ".join(parts))
    def wait_all_lds(self): self.e("s_waitcnt lgkmcnt(0)"); self.lds = []
    def wait_all_vm(self): self.e("s_waitcnt vmcnt(0)"); self.vm = []
    def text(self): return "\n".join(self.lines)
    def stamp(self, k):
        if not DIAG: return
        op = "s_memtime" if 'clk' in OPT else "s_memrealtime"
        self.e(f"{op} s[{68+2*k}:{69+2*k}]")
        self.e("s_waitcnt lgkmcnt(0)"); self.lds = []
    def dump_stamps(self, n):
        if not DIAG: return
        self.e("s_waitcnt vmcnt(0)")
        self.e("s_memrealtime s[66:67]")
        self.e("s_waitcnt lgkmcnt(0)")
        self.e("s_mov_b32 s22, 0x10000000")
        self.e("s_lshl_b32 s64, s2, 4"); self.e("s_add_u32 s64, s64, s54"); self.e("s_lshl_b32 s64, s64, 7")
        self.e("s_add_u32 s64, s64, 0x4000000")
        self.e("v_mov_b32 v1, 0")
        for k in range(n):
            self.e(f"v_mov_b32 v2, s{68+2*k}")
            self.e(f"buffer_store_dword v2, v1, s[20:23], s64 offen offset:{4*k}")
        self.e("v_mov_b32 v3, s66")
        self.e(f"buffer_store_dword v3, v1, s[20:23], s64 offen offset:{4*n}")
        self.e("v_mov_b32 v3, s3")
        self.e(f"buffer_store_dword v3, v1, s[20:23], s64 offen offset:120")

H_BYTES = 43 * 128 * 1024
C1 = -2.0 * 1.4426950408889634 * 0.7978845608028654
C2 = C1 * 0.044715
BUF = 40960
SPIN = 0x40000
HOFF = [int(o[5:]) for o in OPT if o.startswith('hoff=')]
HOFF = (HOFF[0] << 20) if HOFF else 0
def srd(a, d, lo, nbytes):
    if lo == 48 and HOFF:
        a.e(f"s_add_u32 s{d}, s{lo}, {HOFF}")
        a.e(f"s_addc_u32 s{d+1}, s{lo+1}, 0")
        a.e(f"s_and_b32 s{d+1}, s{d+1}, 0xffff")
        a.e(f"s_mov_b32 s{d+2}, {nbytes}")
        a.e(f"s_mov_b32 s{d+3}, 0x20000")
        return
    a.e(f"s_mov_b32 s{d}, s{lo}")
    a.e(f"s_and_b32 s{d+1}, s{lo+1}, 0xffff")
    a.e(f"s_mov_b32 s{d+2}, {nbytes}")
    a.e(f"s_mov_b32 s{d+3}, 0x20000")

a = Asm()
a.label(KN)
a.e("s_cmp_ge_u32 s2, 256")
a.e("s_cbranch_scc1 L_END")
a.e("s_load_dwordx8 s[36:43], s[0:1], 0")
a.e("s_load_dwordx4 s[44:47], s[0:1], 32")
a.e("s_load_dwordx2 s[48:49], s[0:1], 48")
if DIAG:
    a.e("s_memrealtime s[68:69]")
    for k in range(1, 15): a.e(f"s_mov_b32 s{68+2*k}, 0")
a.e("v_and_b32 v1, 63, v0")
a.e("v_lshrrev_b32 v2, 6, v0")
a.e("s_and_b32 s58, s2, 7")
a.e("v_readfirstlane_b32 s54, v2")
a.e("s_lshr_b32 s59, s2, 3")
a.e("s_and_b32 s50, s58, 1")
a.e("s_lshl_b32 s50, s50, 3")
a.e("s_and_b32 s57, s59, 7")
a.e("s_add_u32 s50, s50, s57")
a.e("s_lshr_b32 s51, s58, 1")
a.e("s_lshl_b32 s51, s51, 2")
a.e("s_lshr_b32 s61, s59, 3")
a.e("s_add_u32 s51, s51, s61")
a.e("s_mul_i32 s52, s51, 43")
a.e("s_add_u32 s53, s52, 43")
a.e("s_lshr_b32 s52, s52, 4")
a.e("s_lshr_b32 s53, s53, 4")
a.e("s_sub_u32 s53, s53, s52")
a.e("s_lshl_b32 s56, s58, 2")
a.e("s_add_u32 s56, s56, s61")
a.e("s_and_b32 s55, s54, 3")
a.e("s_mov_b32 s100, s57")
if 'nt2shift' in OPT:
    a.e("s_add_u32 s57, s57, 2")
    a.e("s_and_b32 s57, s57, 7")
a.e("s_mov_b32 s98, s56")
a.e("s_mov_b32 s3, 0")
a.e("s_cmp_ge_u32 s54, 4")
a.e("s_cbranch_scc1 L_COMPUTE")

a.c("LOADER")
a.e("s_lshl_b32 s60, s61, 1")
a.e("s_add_u32 s60, s60, s100")
a.e("v_lshrrev_b32 v20, 3, v1")
a.e("v_lshrrev_b32 v21, 4, v1")
a.e("v_and_b32 v22, 7, v1")
a.e("v_xor_b32 v24, v22, v21")
a.e("v_xor_b32 v23, 4, v24")
a.e("s_lshl_b32 s58, s50, 7")
a.e("s_lshl_b32 s59, s55, 5")
a.e("s_add_u32 s58, s58, s59")
a.e("s_lshl_b32 s58, s58, 10")
a.e("v_lshlrev_b32 v20, 10, v20")
a.e("v_add_u32 v25, s58, v20")
a.e("v_lshl_add_u32 v2, v24, 4, v25")
a.e("v_lshl_add_u32 v3, v23, 4, v25")
a.e("v_add_u32 v3, 8192, v3")
a.e("v_add_u32 v4, 16384, v2")
a.e("v_add_u32 v5, 16384, v3")
a.e("s_mul_i32 s58, s55, 44032")
a.e("s_lshl_b32 s59, s52, 6")
a.e("s_add_u32 s58, s58, s59")
a.e("s_movk_i32 s59, 2752")
for i in range(3):
    a.e(f"v_add_u32 v26, {64*i}, v1")
    a.e("v_mul_u32_u24 v27, 171, v26")
    a.e("v_lshrrev_b32 v27, 11, v27")
    a.e("v_mul_u32_u24 v28, 12, v27")
    a.e("v_sub_u32 v28, v26, v28")
    a.e("v_lshrrev_b32 v29, 2, v27")
    a.e("v_and_b32 v29, 2, v29")
    a.e("v_xor_b32 v28, v28, v29")
    a.e("v_mul_u32_u24 v27, s59, v27")
    a.e("v_lshl_add_u32 v27, v28, 4, v27")
    a.e(f"v_add_u32 v{6+i}, s58, v27")
a.e("s_lshl_b32 s62, s55, 12")
a.e("s_mul_i32 s63, s55, 3072")
a.e("s_add_u32 s63, s63, 16384")
a.e("s_waitcnt lgkmcnt(0)")
srd(a, 8, 36, 2048 * 1024)
srd(a, 12, 38, 512 * 2752)
srd(a, 16, 40, 512 * 2752)

def optval(name, d):
    v = [o[len(name)+1:] for o in OPT if o.startswith(name + '=')]
    return int(v[0]) if v else d
XR = 80
a.e("s_mov_b32 s66, 0")
a.e("s_mov_b32 s67, 0")
a.label("L_LD")
a.e("s_cmp_lt_u32 s66, 2")
a.e("s_cbranch_scc1 L_LD_ISSUE")
a.e("s_waitcnt vmcnt(10)")
a.e("s_barrier")
a.label("L_LD_ISSUE")
a.e("s_add_u32 s59, s60, s66")
a.e("s_and_b32 s59, s59, 7")
a.e("s_lshl_b32 s58, s59, 7")
a.e("s_mul_i32 s59, s59, 176128")
a.e("s_add_u32 s64, s62, s67")
a.e("s_add_u32 s65, s63, s67")
for t in range(4):
    a.e(f"s_add_u32 m0, s64, {t*1024}" if t else "s_mov_b32 m0, s64")
    a.e("s_nop 0")
    a.e(f"buffer_load_dwordx4 v{2+t}, s[8:11], s58 offen lds")
for gu in range(2):
    for i in range(3):
        a.e(f"s_add_u32 m0, s65, {gu*12288 + i*1024}" if (gu or i) else "s_mov_b32 m0, s65")
        a.e("s_nop 0")
        a.e(f"buffer_load_dwordx4 v{6+i}, s[{12+4*gu}:{15+4*gu}], s59 offen lds")
a.e(f"s_add_u32 s67, s67, {BUF}")
a.e(f"s_cmp_eq_u32 s67, {4*BUF}")
a.e("s_cselect_b32 s67, 0, s67")
a.e("s_add_u32 s66, s66, 1")
a.e("s_cmp_lt_u32 s66, 8")
a.e("s_cbranch_scc1 L_LD")
a.e("v_and_b32 v21, 1, v21")
a.e("v_lshlrev_b32 v21, 1, v21")
a.e("v_xor_b32 v22, v22, v21")
a.e("s_lshl_b32 s58, s57, 7")
a.e("v_add_u32 v20, s58, v20")
a.e("v_lshl_add_u32 v9, v22, 4, v20")
a.e("v_xor_b32 v22, 4, v22")
a.e("v_lshl_add_u32 v10, v22, 4, v20")
srd(a, 24, 42, 1376 * 1024)
srd(a, 20, 48, H_BYTES)
srd(a, 28, 44, 2048 * 1024)
srd(a, 32, 46, 256)
srd(a, 4, 48, H_BYTES + 4096)
a.e("s_mul_i32 s64, s55, 10240")
a.e("s_mul_i32 s65, s55, 81920")
a.e("s_lshr_b32 s101, s2, 3")
a.e("s_lshl_b32 s101, s101, 2")
a.e("s_add_u32 s101, s101, s55")
a.e("s_mul_i32 s101, s101, 11008")
a.e("v_lshlrev_b32 v30, 7, v1")
a.e("v_min_u32 v31, 21, v1")
a.e("v_lshlrev_b32 v31, 7, v31")
a.e("v_add_u32 v31, 8192, v31")
a.e("s_lshl_b32 s58, s50, 4")
a.e("s_lshr_b32 s59, s56, 1")
a.e("s_lshl_b32 s59, s59, 4")
a.e("v_mov_b32 v17, s58")
a.e("v_mov_b32 v18, s59")
a.e("v_cmp_gt_u32 vcc, 32, v1")
a.e("s_nop 1")
a.e("v_cndmask_b32 v17, v18, v17, vcc")
a.e("s_waitcnt vmcnt(10)")
a.e("s_barrier")
a.e("buffer_load_dword v20, v17, s[32:35], 0 offen sc1")
a.e("buffer_load_dword v32, v30, s[24:27], s101 offen")
a.e("s_waitcnt vmcnt(2)")
a.e("s_barrier")
if 'nopf2' in OPT or 'latepf2' in OPT:
    a.e("s_waitcnt vmcnt(1)")
else:
    a.e("buffer_load_dword v33, v31, s[24:27], s101 offen")
    a.e("s_waitcnt vmcnt(2)")
a.e("v_cmp_eq_u32 vcc, 0, v20")
a.e("s_cbranch_vccz L_POLLC_DONE")
a.label("L_POLLC")
a.e("buffer_load_dword v20, v17, s[32:35], 0 offen sc1")
a.e("s_add_u32 s3, s3, 1")
a.e(f"s_cmp_gt_u32 s3, {SPIN}")
a.e("s_cbranch_scc1 L_POLLC_DONE")
a.e("s_waitcnt vmcnt(0)")
a.e("v_cmp_eq_u32 vcc, 0, v20")
a.e("s_cbranch_vccnz L_POLLC")
a.label("L_POLLC_DONE")
a.stamp(4)
a.e("s_barrier")
a.stamp(5)
if 'latepf2' in OPT: a.e("buffer_load_dword v33, v31, s[24:27], s101 offen")
a.e("s_mov_b32 s66, 0")
a.label("L_LW")
a.e("s_add_u32 s58, s98, s66")
a.e("s_and_b32 s58, s58, 3")
a.e("s_mul_i32 s58, s58, 327680")
a.e("s_add_u32 s58, s58, s65")
for i in range(10):
    a.e(f"s_add_u32 m0, s64, {i*1024}" if i else "s_mov_b32 m0, s64")
    if i: a.e("s_add_u32 s58, s58, 8192")
    else: a.e("s_nop 0")
    a.e(f"buffer_load_dwordx4 v{9 + (i & 1)}, s[24:27], s58 offen lds")
a.e(f"s_add_u32 s64, s64, {BUF}")
a.e("s_add_u32 s66, s66, 1")
a.e("s_cmp_lt_u32 s66, 4")
a.e("s_cbranch_scc1 L_LW")
a.e("s_add_u32 s58, s55, 40")
a.e("s_lshl_b32 s58, s58, 15")
for i in range(4):
    a.e(f"buffer_load_dwordx4 v[{XR+4*i}:{XR+4*i+3}], v{9 + (i & 1)}, s[24:27], s58 offen")
    if i < 3: a.e("s_add_u32 s58, s58, 8192")
a.stamp(6)
a.e("s_branch L_G2")

a.reset()
a.e(".p2align 6")
a.label("L_COMPUTE")
a.e("s_and_b32 s62, s55, 1")
a.e("s_lshr_b32 s63, s55, 1")
a.e("v_and_b32 v20, 15, v1")
a.e("v_lshrrev_b32 v21, 4, v1")
a.e("v_bfe_u32 v22, v20, 1, 3")
a.e("v_xor_b32 v22, v22, v21")
a.e("v_lshlrev_b32 v22, 4, v22")
a.e("v_lshl_add_u32 v22, v20, 7, v22")
a.e("s_lshl_b32 s58, s62, 13")
a.e("v_add_u32 v2, s58, v22")
a.e("v_xor_b32 v3, 64, v2")
a.e("v_mov_b32 v192, v2")
a.e("v_mov_b32 v193, v3")
a.e("v_bfe_u32 v22, v1, 2, 2")
a.e("v_lshl_add_u32 v22, v21, 3, v22")
a.e("v_mul_u32_u24 v22, 192, v22")
a.e("v_and_b32 v23, 3, v1")
a.e("v_lshl_add_u32 v22, v23, 3, v22")
a.e("v_add_u32 v22, 16384, v22")
a.e("v_and_b32 v23, 1, v21")
a.e("s_mul_i32 s64, s63, s53")
for ft in range(3):
    a.e(f"s_add_u32 s58, s64, {ft}")
    a.e("v_xor_b32 v24, s58, v23")
    a.e(f"v_lshl_add_u32 v{6+ft}, v24, 5, v22")
    a.e(f"v_mov_b32 v{194+ft}, v{6+ft}")
a.e("v_lshlrev_b32 v24, 10, v23")
a.e("v_lshrrev_b32 v25, 1, v21")
a.e("v_lshl_add_u32 v24, v25, 8, v24")
a.e("v_lshl_add_u32 v24, v20, 4, v24")
a.e("s_lshl_b32 s58, s50, 3")
a.e("s_lshl_b32 s59, s62, 2")
a.e("s_add_u32 s58, s58, s59")
a.e("s_lshl_b32 s58, s58, 10")
a.e("v_add_u32 v12, s58, v24")
a.e(f"v_mov_b32 v14, 0x{f2u(C1):08x}")
a.e(f"v_mov_b32 v15, 0x{f2u(C1):08x}")
a.e(f"s_mov_b32 s90, 0x{f2u(C2):08x}")
a.e(f"s_mov_b32 s91, 0x{f2u(C2):08x}")
a.e("s_mov_b32 s92, 1.0")
a.e("s_mov_b32 s93, 1.0")
a.e("s_lshl_b32 s60, s52, 1")
a.e("s_add_u32 s60, s60, s64")
for ft in range(3):
    a.e(f"s_add_u32 s58, s60, {ft}")
    a.e("s_lshr_b32 s59, s58, 1")
    a.e("s_lshl_b32 s59, s59, 17")
    a.e("s_and_b32 s58, s58, 1")
    a.e("s_lshl_b32 s58, s58, 9")
    a.e(f"s_add_u32 s{94+ft}, s58, s59")
a.e("s_lshl_b32 s61, s50, 1")
a.e("s_add_u32 s61, s61, s62")
a.e("s_lshl_b32 s61, s61, 7")
a.e("s_lshl_b32 s58, s51, 1")
a.e("s_add_u32 s58, s58, s63")
a.e("s_lshl_b32 s58, s58, 2")
a.e("s_add_u32 s61, s61, s58")
a.e(f"s_add_u32 s61, s61, {H_BYTES}")
a.e("v_mov_b32 v13, 0")
a.e("s_waitcnt lgkmcnt(0)")
srd(a, 20, 48, H_BYTES)
srd(a, 28, 44, 2048 * 1024)
srd(a, 32, 46, 256)
srd(a, 4, 48, H_BYTES + 4096)
if 'mallpf' in OPT:
    a.e("s_cmp_lg_u32 s54, 5")
    a.e("s_cbranch_scc1 L_NOMPF")
    srd(a, 24, 42, 1376 * 1024)
    a.e("s_mul_i32 s58, s2, 5504")
    a.e("v_min_u32 v24, 42, v1")
    a.e("v_lshlrev_b32 v24, 7, v24")
    a.e("buffer_load_dword v200, v24, s[24:27], s58 offen")
    a.label("L_NOMPF")
if 'tlbpf' in OPT:
    SH = optval('tlbsh', 17)
    a.e("s_cmp_lg_u32 s54, 6")
    a.e("s_cbranch_scc1 L_NOTLB")
    srd(a, 24, 42, 1376 * 1024)
    a.e(f"v_lshlrev_b32 v24, {SH}, v1")
    a.e("buffer_load_dword v200, v24, s[4:7], 0 offen")
    a.e("buffer_load_dword v201, v24, s[24:27], 0 offen")
    a.e("buffer_load_dword v202, v24, s[28:31], 0 offen")
    a.label("L_NOTLB")
a.e("s_lshl_b32 s97, s51, 3")
a.e("s_add_u32 s97, s97, s54")
a.e("s_cmp_lg_u32 s97, 4")
a.e("s_cbranch_scc1 L_NOCLR")
a.e("v_lshlrev_b32 v24, 2, v1")
a.e("buffer_store_dword v13, v24, s[4:7], s61 offen sc1")
a.label("L_NOCLR")
if 'noprio' not in OPT: a.e("s_setprio 3")

def WF(n, j): return 16 + 24 * (n & 1) + 4 * j
def XF(n, mi): return 64 + 16 * (n & 1) + 4 * mi
def ACC(j, mi): return 96 + 16 * j + 4 * mi
def read_x(n, mis):
    s2 = n & 1
    for mi in mis:
        a.lds_op(f"ds_read_b128 v[{XF(n,mi)}:{XF(n,mi)+3}], v{2 + s2} offset:{mi * 2048}", ("x", n, mi))
def read_w(n, j):
    s2 = n & 1
    ft, gu = j >> 1, j & 1
    for h in range(2):
        off = gu * 12288 + s2 * 6144 + h * 768
        a.lds_op(f"ds_read_b64_tr_b16 v[{WF(n,j)+2*h}:{WF(n,j)+2*h+1}], v{6 + ft} offset:{off}", ("w", n, j))
for r in range(96, 192): a.e(f"v_mov_b32 v{r}, 0")
a.e("s_mov_b32 s66, 0")
a.e("s_mov_b32 s67, 0")
a.e("s_barrier")
a.stamp(1)
read_w(0, 0)
read_x(0, range(4))
for j in range(1, 6): read_w(0, j)
BJ = 16
a.e(".p2align 3")
a.label("L_MAIN")
for n in range(2):
    reads = [("w", 0), ("x", [0, 1]), ("x", [2, 3])] + [("w", j) for j in range(1, 6)]
    slots = [BJ + k for k in range(8)] if n == 1 else [0, 2, 4, 6, 8, 12, 16, 20]
    for j in range(6):
        for mi in range(4):
            slot = 4 * j + mi
            if n == 1 and slot == 8:
                a.e(f"s_add_u32 s67, s67, {BUF}")
                a.e(f"s_cmp_eq_u32 s67, {4*BUF}")
                a.e("s_cselect_b32 s67, 0, s67")
            if n == 1 and 9 <= slot <= 13:
                k = slot - 9
                a.e(f"v_add_u32 v{[2,3,6,7,8][k]}, s67, v{192+k}")
            if n == 1 and slot == BJ:
                a.e("s_cmp_eq_u32 s66, 7")
                a.e("s_cbranch_scc1 L_CNT_RET")
                a.e("s_barrier")
                a.e("s_cmp_lg_u32 s97, 4")
                a.e("s_cbranch_scc0 L_CNT")
                a.label("L_CNT_RET")
            if mi == 0 or j == 0:
                a.wait(lds_tags=[("w", n, j), ("x", n, mi)])
            a.e(f"v_mfma_f32_16x16x32_bf16 v[{ACC(j,mi)}:{ACC(j,mi)+3}], v[{WF(n,j)}:{WF(n,j)+3}], v[{XF(n,mi)}:{XF(n,mi)+3}], v[{ACC(j,mi)}:{ACC(j,mi)+3}]")
            for k, sl in enumerate(slots):
                if sl == slot:
                    kind, arg = reads[k]
                    if kind == "w": read_w((n + 1) & 1, arg)
                    else: read_x((n + 1) & 1, arg)
a.e("s_add_u32 s66, s66, 1")
a.e("s_cmp_lt_u32 s66, 8")
a.e("s_cbranch_scc1 L_MAIN")
a.wait_all_lds()
a.e("s_barrier")
a.e("s_nop 7")
a.stamp(5)
T = 16
for ft in range(3):
    if ft == 2:
        a.e("s_cmp_lt_u32 s53, 3")
        a.e("s_cbranch_scc1 L_EPI_DONE")
    for pr in range(2):
        G, U = ACC(2 * ft, 2 * pr), ACC(2 * ft + 1, 2 * pr)
        t0 = T + 16 * pr
        p0 = t0 + 8
        ps = range(0, 8, 2)
        if 'nopk' not in OPT:
            for r in ps: a.e(f"v_pk_mul_f32 v[{t0+r}:{t0+r+1}], v[{G+r}:{G+r+1}], v[{G+r}:{G+r+1}]")
            for r in ps: a.e(f"v_pk_fma_f32 v[{t0+r}:{t0+r+1}], v[{t0+r}:{t0+r+1}], s[90:91], v[14:15]")
            for r in ps: a.e(f"v_pk_mul_f32 v[{t0+r}:{t0+r+1}], v[{t0+r}:{t0+r+1}], v[{G+r}:{G+r+1}]")
            for r in range(8): a.e(f"v_exp_f32 v{t0+r}, v{t0+r}")
            for r in ps: a.e(f"v_pk_mul_f32 v[{p0+r}:{p0+r+1}], v[{G+r}:{G+r+1}], v[{U+r}:{U+r+1}]")
            for r in ps: a.e(f"v_pk_add_f32 v[{t0+r}:{t0+r+1}], v[{t0+r}:{t0+r+1}], s[92:93]")
            for r in range(8): a.e(f"v_rcp_f32 v{t0+r}, v{t0+r}")
            a.e("s_nop 0")
            for r in ps: a.e(f"v_pk_mul_f32 v[{t0+r}:{t0+r+1}], v[{t0+r}:{t0+r+1}], v[{p0+r}:{p0+r+1}]")
        else:
            rs = range(8)
            for r in rs: a.e(f"v_mul_f32 v{t0+r}, v{G+r}, v{G+r}")
            for r in rs: a.e(f"v_fmamk_f32 v{t0+r}, v{t0+r}, 0x{f2u(C2):08x}, v14")
            for r in rs: a.e(f"v_mul_f32 v{t0+r}, v{t0+r}, v{G+r}")
            for r in rs: a.e(f"v_exp_f32 v{t0+r}, v{t0+r}")
            for r in rs: a.e(f"v_mul_f32 v{p0+r}, v{G+r}, v{U+r}")
            for r in rs: a.e(f"v_add_f32 v{t0+r}, 1.0, v{t0+r}")
            for r in rs: a.e(f"v_rcp_f32 v{t0+r}, v{t0+r}")
            a.e("s_nop 0")
            for r in rs: a.e(f"v_mul_f32 v{t0+r}, v{t0+r}, v{p0+r}")
        O = 64 + 8 * ft + 4 * pr
        for i in range(4): a.e(f"v_cvt_pk_bf16_f32 v{O+i}, v{t0+2*i}, v{t0+2*i+1}")
        a.e("s_nop 1")
        a.e(f"v_permlane16_swap_b32 v{O}, v{O+2}")
        a.e(f"v_permlane16_swap_b32 v{O+1}, v{O+3}")
        a.e(f"buffer_store_dwordx4 v[{O}:{O+3}], v12, s[20:23], s{94+ft} offen offset:{pr*2048} sc1")
a.label("L_EPI_DONE")
a.stamp(6)
a.e("s_waitcnt vmcnt(0)")
a.e("v_mov_b32 v88, 1")
a.e("s_mov_b64 exec, 1")
a.e("buffer_store_dword v88, v13, s[4:7], s61 offen sc1")
a.e("s_mov_b64 exec, -1")
a.e("s_setprio 0")

a.reset()
a.label("L_G2")
a.e("s_lshr_b32 s63, s54, 2")
a.e("v_lshrrev_b32 v21, 4, v1")
a.e("v_and_b32 v23, 1, v21")
a.e("v_bfe_u32 v22, v1, 2, 2")
a.e("v_lshl_add_u32 v22, v21, 3, v22")
a.e("v_lshlrev_b32 v22, 7, v22")
a.e("v_and_b32 v24, 1, v1")
a.e("v_lshl_add_u32 v22, v24, 3, v22")
a.e("v_bfe_u32 v24, v1, 1, 1")
a.e("v_lshl_add_u32 v22, v24, 4, v22")
a.e(f"s_mul_i32 s58, s55, {BUF}")
a.e("v_add_u32 v22, s58, v22")
a.e("v_bfe_u32 v24, v1, 3, 1")
a.e("v_lshl_add_u32 v24, v23, 1, v24")
a.e("v_lshlrev_b32 v24, 1, v24")
for j in range(4):
    a.e(f"v_xor_b32 v25, {2*j}, v24")
    a.e(f"v_lshl_add_u32 v{2+j}, v25, 4, v22")
a.e("v_lshlrev_b32 v14, 4, v1")
a.e("s_mov_b32 s65, s57")
a.e("s_mov_b32 s62, s65")
a.e("s_lshl_b32 s60, s65, 12")
a.e("s_add_u32 s58, s58, s60")
a.e("v_add_u32 v7, s58, v14")
a.e("s_add_u32 s64, s55, s98")
a.e("s_and_b32 s64, s64, 3")
a.e("s_mul_i32 s64, s64, 10")
a.e(f"s_mul_i32 s58, s55, {BUF}")
a.e("s_lshl_b32 s59, s63, 13")
a.e("s_add_u32 s58, s58, s59")
a.e("v_add_u32 v15, s58, v14")
a.e("s_lshl_b32 s58, s56, 12")
a.e("s_lshl_b32 s59, s63, 11")
a.e("s_add_u32 s58, s58, s59")
a.e("v_add_u32 v6, s58, v14")
a.e("v_and_b32 v24, 31, v1")
a.e("v_lshlrev_b32 v13, 2, v24")
a.e("v_lshrrev_b32 v24, 1, v24")
a.e("v_mul_u32_u24 v25, 43, v24")
a.e("v_add_u32 v26, 43, v25")
a.e("v_lshrrev_b32 v25, 4, v25")
a.e("v_lshrrev_b32 v26, 4, v26")
a.e("s_add_u32 s58, s64, 10")
a.e("v_cmp_gt_u32 s[90:91], s58, v25")
a.e("v_cmp_lt_u32 s[92:93], s64, v26")
a.e("s_and_b64 s[90:91], s[90:91], s[92:93]")
a.e("v_cmp_eq_u32 s[92:93], 15, v24")
a.e("s_or_b64 s[90:91], s[90:91], s[92:93]")
a.e("s_lshl_b32 s61, s56, 7")
a.e(f"s_add_u32 s61, s61, {H_BYTES}")
def HB(i, mi): return 96 + i * 8 + 4 * mi
def AFR(i, j): return 16 + (i & 1) * 16 + 4 * j
def ACC2(j, mi): return 48 + 16 * mi + 4 * j
def HS(i): return f"s{70+i if not DIAG else 8+i}"
def h_soff(i):
    if i < 10:
        a.e("s_add_u32 s58, s64, s65")
        a.e(f"s_lshl_b32 {HS(i)}, s58, 17")
        a.e("s_add_u32 s65, s65, 1")
        a.e("s_cmp_eq_u32 s65, 10")
        a.e("s_cselect_b32 s65, 0, s65")
    else:
        a.e("s_add_u32 s58, s55, 40")
        a.e(f"s_lshl_b32 {HS(i)}, s58, 17")
def h_loads(i):
    for mi in range(2):
        a.vm_op(f"buffer_load_dwordx4 v[{HB(i,mi)}:{HB(i,mi)+3}], v6, s[20:23], {HS(i)} offen offset:{mi*1024} sc1", ("h", i))
def a_addr(i):
    if i < 10:
        a.e("s_lshl_b32 s59, s62, 12")
        a.e("s_add_u32 s62, s62, 1")
        a.e("s_cmp_eq_u32 s62, 10")
        a.e("s_cselect_b32 s62, 0, s62")
        sreg = "s59"
    else: sreg = "s60"
    for j in range(4): a.e(f"v_add_u32 v{8+j}, {sreg}, v{2+j}")
def a_read(i, j):
    for hh in range(2):
        a.lds_op(f"ds_read_b64_tr_b16 v[{AFR(i,j)+2*hh}:{AFR(i,j)+2*hh+1}], v{8+j} offset:{hh*512}", ("a", i, j))
for i in range(11): h_soff(i)
a_addr(0)
a.e("s_waitcnt vmcnt(0)")
a.e("s_barrier")
a.stamp(7)
for j in range(4): a_read(0, j)
a.wait_all_lds()
a.e("s_barrier")
a.e("s_cmp_ge_u32 s54, 4")
a.e("s_cbranch_scc1 L_NOXW")
for q in range(4):
    a.e(f"ds_write_b128 v7, v[{XR+4*q}:{XR+4*q+3}] offset:{q*1024}")
a.e("s_waitcnt lgkmcnt(0)")
a.label("L_NOXW")
a.e("s_barrier")
if optval('dly', 0): a.e(f"s_sleep {optval('dly', 0)}")
a.label("L_POLL")
a.e("buffer_load_dword v12, v13, s[4:7], s61 offen sc1")
a.e("s_add_u32 s3, s3, 1")
a.e(f"s_cmp_gt_u32 s3, {SPIN}")
a.e("s_cbranch_scc1 L_POLLDONE")
a.e("s_waitcnt vmcnt(0)")
a.e("v_cmp_ne_u32 vcc, 1, v12")
a.e("s_and_b64 vcc, vcc, s[90:91]")
a.e("s_cbranch_vccnz L_POLL")
a.label("L_POLLDONE")
a.stamp(8)
NW = optval('nw', 3)
AD = optval('ad', 1)
for i in range(min(NW, 11)): h_loads(i)
if AD == 2:
    a_addr(1)
    for j in range(4): a_read(1, j)
for i in range(11):
    if i + AD < 11: a_addr(i + AD)
    a.wait(vm_tags=[("h", i)])
    if i == 0: a.stamp(9)
    for j in range(4):
        a.wait(lds_tags=[("a", i, j)])
        for mi in range(2):
            cin = "0" if i == 0 else f"v[{ACC2(j,mi)}:{ACC2(j,mi)+3}]"
            a.e(f"v_mfma_f32_16x16x32_bf16 v[{ACC2(j,mi)}:{ACC2(j,mi)+3}], v[{AFR(i,j)}:{AFR(i,j)+3}], v[{HB(i,mi)}:{HB(i,mi)+3}], {cin}")
            if mi == 0 and i + AD < 11: a_read(i + AD, j)
        if j == optval('hj', 1) and i + NW < 11: h_loads(i + NW)
a.stamp(10)
a.e("s_barrier")
a.e("s_nop 7")
for mi in range(2):
    for j in range(4):
        a.e(f"ds_write_b128 v15, v[{ACC2(j,mi)}:{ACC2(j,mi)+3}] offset:{mi*4096 + j*1024}")
a.e("s_lshl_b32 s58, s55, 12")
a.e("s_lshl_b32 s59, s63, 11")
a.e("s_add_u32 s58, s58, s59")
a.e("v_add_u32 v8, s58, v14")
a.e(f"v_add_u32 v9, {2*BUF}, v8")
a.e("s_lshl_b32 s58, s56, 6")
a.e("s_lshl_b32 s59, s55, 4")
a.e("s_add_u32 s58, s58, s59")
a.e("s_lshl_b32 s58, s58, 10")
a.e("s_lshl_b32 s59, s57, 7")
a.e("s_add_u32 s58, s58, s59")
a.e("s_lshl_b32 s59, s63, 6")
a.e("s_add_u32 s58, s58, s59")
a.e("v_and_b32 v10, 15, v1")
a.e("v_lshlrev_b32 v10, 10, v10")
a.e("v_bfe_u32 v11, v1, 4, 1")
a.e("v_lshl_add_u32 v10, v11, 5, v10")
a.e("v_lshrrev_b32 v11, 5, v1")
a.e("v_lshl_add_u32 v10, v11, 4, v10")
a.wait_all_lds()
a.e("s_barrier")
for src in range(4):
    for jj in range(2):
        r = 96 + 8 * src + 4 * jj
        a.e(f"ds_read_b128 v[{r}:{r+3}], v{8 + (src >> 1)} offset:{(src & 1)*BUF + jj*1024}")
a.e("s_waitcnt lgkmcnt(4)")
for k in range(0, 8, 2): a.e(f"v_pk_add_f32 v[{96+k}:{97+k}], v[{96+k}:{97+k}], v[{104+k}:{105+k}]")
a.e("s_waitcnt lgkmcnt(0)")
for k in range(0, 8, 2): a.e(f"v_pk_add_f32 v[{112+k}:{113+k}], v[{112+k}:{113+k}], v[{120+k}:{121+k}]")
for k in range(0, 8, 2): a.e(f"v_pk_add_f32 v[{96+k}:{97+k}], v[{96+k}:{97+k}], v[{112+k}:{113+k}]")
for k in range(4): a.e(f"v_cvt_pk_bf16_f32 v{16+k}, v{96+2*k}, v{96+2*k+1}")
a.e("s_nop 1")
a.e("v_permlane16_swap_b32 v16, v18")
a.e("v_permlane16_swap_b32 v17, v19")
OUTF = ' sc1' if 'outsc1' in OPT else ' nt' if 'outnt' in OPT else ''
a.e(f"buffer_store_dwordx4 v[16:19], v10, s[28:31], s58 offen{OUTF}")
a.dump_stamps(11)
a.label("L_END")
a.e("s_endpgm")
a.label("L_CNT")
a.e("s_mov_b32 s97, 0")
a.e("v_mov_b32 v197, 1")
a.e("s_lshl_b32 s58, s50, 4")
a.e("s_waitcnt vmcnt(0)")
a.e("s_mov_b64 exec, 1")
a.e("buffer_store_dword v197, v13, s[32:35], s58 offen sc1")
a.e("s_mov_b64 exec, -1")
a.e("s_branch L_CNT_RET")
a.label("L_CODE_END")

HDR = open("standalone__glu_gated_geglu__prompt.s.ref").read().split("; Override")[0]
out = HDR + "; @launch grid=(256,1,1) block=(512,1,1) lds=163840\n"
out += f'.amdgcn_target "amdgcn-amd-amdhsa--gfx950"\n.text\n.globl {KN}\n.p2align 8\n.type {KN},@function\n'
out += f".set CODE_END_OFF, L_CODE_END - {KN} - 1024\n"
out += a.text() + f"""
.section .rodata,"a"
.p2align 6
.amdhsa_kernel {KN}
  .amdhsa_next_free_vgpr 256
  .amdhsa_next_free_sgpr 102
  .amdhsa_accum_offset 256
  .amdhsa_group_segment_fixed_size 0
  .amdhsa_kernarg_size 56
  .amdhsa_user_sgpr_count 2
  .amdhsa_user_sgpr_kernarg_segment_ptr 1
  .amdhsa_system_sgpr_workgroup_id_x 1
.end_amdhsa_kernel
"""
open(sys.argv[1], "w").write(out)
```

```python
import sys, struct
OPT = set(sys.argv[2:])
DIAG = 'diag' in OPT
KN = "standalone__glu_gated_geglu__prompt_kernel"
def f2u(x): return struct.unpack("<I", struct.pack("<f", x))[0]

class Asm:
    def __init__(self):
        self.lines = []; self.lds = []; self.vm = []; self.nst = 0
    def e(self, s): self.lines.append("    " + s)
    def label(self, s): self.lines.append(s + ":")
    def c(self, s): self.lines.append("    ; " + s)
    def reset(self): self.lds = []; self.vm = []
    def lds_op(self, s, tag=None): self.e(s); self.lds.append(tag)
    def vm_op(self, s, tag=None): self.e(s); self.vm.append(tag)
    def _need(self, q, tags):
        last = -1
        for i, t in enumerate(q):
            if t in tags: last = i
        return last
    def wait(self, lds_tags=(), vm_tags=()):
        parts = []
        if vm_tags:
            last = self._need(self.vm, vm_tags)
            if last >= 0:
                n = len(self.vm) - 1 - last
                assert n <= 63, n
                parts.append(f"vmcnt({n})"); self.vm = self.vm[last + 1:]
        if lds_tags:
            last = self._need(self.lds, lds_tags)
            if last >= 0:
                n = min(len(self.lds) - 1 - last, 15)
                parts.append(f"lgkmcnt({n})")
                self.lds = self.lds[len(self.lds) - n:] if n else []
        if parts: self.e("s_waitcnt " + " ".join(parts))
    def wait_all_lds(self): self.e("s_waitcnt lgkmcnt(0)"); self.lds = []
    def wait_all_vm(self): self.e("s_waitcnt vmcnt(0)"); self.vm = []
    def text(self): return "\n".join(self.lines)
    def stamp(self, k):
        if not DIAG: return
        op = "s_memtime" if 'clk' in OPT else "s_memrealtime"
        self.e(f"{op} s[{68+2*k}:{69+2*k}]")
        self.e("s_waitcnt lgkmcnt(0)"); self.lds = []
    def dump_stamps(self, n):
        if not DIAG: return
        self.e("s_waitcnt vmcnt(0)")
        self.e("s_memrealtime s[66:67]")
        self.e("s_waitcnt lgkmcnt(0)")
        self.e("s_mov_b32 s22, 0x10000000")
        self.e("s_lshl_b32 s64, s2, 4"); self.e("s_add_u32 s64, s64, s54"); self.e("s_lshl_b32 s64, s64, 7")
        self.e("s_add_u32 s64, s64, 0x4000000")
        self.e("v_mov_b32 v1, 0")
        for k in range(n):
            self.e(f"v_mov_b32 v2, s{68+2*k}")
            self.e(f"buffer_store_dword v2, v1, s[20:23], s64 offen offset:{4*k}")
        self.e("v_mov_b32 v3, s66")
        self.e(f"buffer_store_dword v3, v1, s[20:23], s64 offen offset:{4*n}")
        self.e("v_mov_b32 v3, s3")
        self.e(f"buffer_store_dword v3, v1, s[20:23], s64 offen offset:120")

H_BYTES = 43 * 128 * 1024
C1 = -2.0 * 1.4426950408889634 * 0.7978845608028654
C2 = C1 * 0.044715
BUF = 40960
SPIN = 0x40000
HOFF = [int(o[5:]) for o in OPT if o.startswith('hoff=')]
HOFF = (HOFF[0] << 20) if HOFF else 0
def srd(a, d, lo, nbytes):
    if lo == 48 and HOFF:
        a.e(f"s_add_u32 s{d}, s{lo}, {HOFF}")
        a.e(f"s_addc_u32 s{d+1}, s{lo+1}, 0")
        a.e(f"s_and_b32 s{d+1}, s{d+1}, 0xffff")
        a.e(f"s_mov_b32 s{d+2}, {nbytes}")
        a.e(f"s_mov_b32 s{d+3}, 0x20000")
        return
    a.e(f"s_mov_b32 s{d}, s{lo}")
    a.e(f"s_and_b32 s{d+1}, s{lo+1}, 0xffff")
    a.e(f"s_mov_b32 s{d+2}, {nbytes}")
    a.e(f"s_mov_b32 s{d+3}, 0x20000")

a = Asm()
a.label(KN)
a.e("s_cmp_ge_u32 s2, 256")
a.e("s_cbranch_scc1 L_END")
a.e("s_load_dwordx8 s[36:43], s[0:1], 0")
a.e("s_load_dwordx4 s[44:47], s[0:1], 32")
a.e("s_load_dwordx2 s[48:49], s[0:1], 48")
if DIAG:
    a.e("s_memrealtime s[68:69]")
    for k in range(1, 15): a.e(f"s_mov_b32 s{68+2*k}, 0")
a.e("v_and_b32 v1, 63, v0")
a.e("v_lshrrev_b32 v2, 6, v0")
a.e("s_and_b32 s58, s2, 7")
a.e("v_readfirstlane_b32 s54, v2")
a.e("s_lshr_b32 s59, s2, 3")
a.e("s_and_b32 s50, s58, 1")
a.e("s_lshl_b32 s50, s50, 3")
a.e("s_and_b32 s57, s59, 7")
a.e("s_add_u32 s50, s50, s57")
a.e("s_lshr_b32 s51, s58, 1")
a.e("s_lshl_b32 s51, s51, 2")
a.e("s_lshr_b32 s61, s59, 3")
a.e("s_add_u32 s51, s51, s61")
a.e("s_mul_i32 s52, s51, 43")
a.e("s_add_u32 s53, s52, 43")
a.e("s_lshr_b32 s52, s52, 4")
a.e("s_lshr_b32 s53, s53, 4")
a.e("s_sub_u32 s53, s53, s52")
a.e("s_lshl_b32 s56, s58, 2")
a.e("s_add_u32 s56, s56, s61")
a.e("s_and_b32 s55, s54, 3")
a.e("s_mov_b32 s100, s57")
if 'nt2shift' in OPT:
    a.e("s_add_u32 s57, s57, 2")
    a.e("s_and_b32 s57, s57, 7")
a.e("s_mov_b32 s98, s56")
a.e("s_mov_b32 s3, 0")
a.e("s_cmp_ge_u32 s54, 4")
a.e("s_cbranch_scc1 L_COMPUTE")

a.c("LOADER")
a.e("s_lshl_b32 s60, s61, 1")
a.e("s_add_u32 s60, s60, s100")
a.e("v_lshrrev_b32 v20, 3, v1")
a.e("v_lshrrev_b32 v21, 4, v1")
a.e("v_and_b32 v22, 7, v1")
a.e("v_xor_b32 v24, v22, v21")
a.e("v_xor_b32 v23, 4, v24")
a.e("s_lshl_b32 s58, s50, 7")
a.e("s_lshl_b32 s59, s55, 5")
a.e("s_add_u32 s58, s58, s59")
a.e("s_lshl_b32 s58, s58, 10")
a.e("v_lshlrev_b32 v20, 10, v20")
a.e("v_add_u32 v25, s58, v20")
a.e("v_lshl_add_u32 v2, v24, 4, v25")
a.e("v_lshl_add_u32 v3, v23, 4, v25")
a.e("v_add_u32 v3, 8192, v3")
a.e("v_add_u32 v4, 16384, v2")
a.e("v_add_u32 v5, 16384, v3")
a.e("s_mul_i32 s58, s55, 44032")
a.e("s_lshl_b32 s59, s52, 6")
a.e("s_add_u32 s58, s58, s59")
a.e("s_movk_i32 s59, 2752")
for i in range(3):
    a.e(f"v_add_u32 v26, {64*i}, v1")
    a.e("v_mul_u32_u24 v27, 171, v26")
    a.e("v_lshrrev_b32 v27, 11, v27")
    a.e("v_mul_u32_u24 v28, 12, v27")
    a.e("v_sub_u32 v28, v26, v28")
    a.e("v_lshrrev_b32 v29, 2, v27")
    a.e("v_and_b32 v29, 2, v29")
    a.e("v_xor_b32 v28, v28, v29")
    a.e("v_mul_u32_u24 v27, s59, v27")
    a.e("v_lshl_add_u32 v27, v28, 4, v27")
    a.e(f"v_add_u32 v{6+i}, s58, v27")
a.e("s_lshl_b32 s62, s55, 12")
a.e("s_mul_i32 s63, s55, 3072")
a.e("s_add_u32 s63, s63, 16384")
a.e("s_waitcnt lgkmcnt(0)")
srd(a, 8, 36, 2048 * 1024)
srd(a, 12, 38, 512 * 2752)
srd(a, 16, 40, 512 * 2752)

def optval(name, d):
    v = [o[len(name)+1:] for o in OPT if o.startswith(name + '=')]
    return int(v[0]) if v else d
XR = 80
a.e("s_mov_b32 s66, 0")
a.e("s_mov_b32 s67, 0")
a.label("L_LD")
a.e("s_cmp_lt_u32 s66, 2")
a.e("s_cbranch_scc1 L_LD_ISSUE")
a.e("s_waitcnt vmcnt(10)")
a.e("s_barrier")
a.label("L_LD_ISSUE")
a.e("s_add_u32 s59, s60, s66")
a.e("s_and_b32 s59, s59, 7")
a.e("s_lshl_b32 s58, s59, 7")
a.e("s_mul_i32 s59, s59, 176128")
a.e("s_add_u32 s64, s62, s67")
a.e("s_add_u32 s65, s63, s67")
for t in range(4):
    a.e(f"s_add_u32 m0, s64, {t*1024}" if t else "s_mov_b32 m0, s64")
    a.e("s_nop 0")
    a.e(f"buffer_load_dwordx4 v{2+t}, s[8:11], s58 offen lds")
for gu in range(2):
    for i in range(3):
        a.e(f"s_add_u32 m0, s65, {gu*12288 + i*1024}" if (gu or i) else "s_mov_b32 m0, s65")
        a.e("s_nop 0")
        a.e(f"buffer_load_dwordx4 v{6+i}, s[{12+4*gu}:{15+4*gu}], s59 offen lds")
a.e(f"s_add_u32 s67, s67, {BUF}")
a.e(f"s_cmp_eq_u32 s67, {4*BUF}")
a.e("s_cselect_b32 s67, 0, s67")
a.e("s_add_u32 s66, s66, 1")
a.e("s_cmp_lt_u32 s66, 8")
a.e("s_cbranch_scc1 L_LD")
a.e("v_and_b32 v21, 1, v21")
a.e("v_lshlrev_b32 v21, 1, v21")
a.e("v_xor_b32 v22, v22, v21")
a.e("s_lshl_b32 s58, s57, 7")
a.e("v_add_u32 v20, s58, v20")
a.e("v_lshl_add_u32 v9, v22, 4, v20")
a.e("v_xor_b32 v22, 4, v22")
a.e("v_lshl_add_u32 v10, v22, 4, v20")
srd(a, 24, 42, 1376 * 1024)
srd(a, 20, 48, H_BYTES)
srd(a, 28, 44, 2048 * 1024)
srd(a, 32, 46, 256)
srd(a, 4, 48, H_BYTES + 4096)
a.e("s_mul_i32 s64, s55, 10240")
a.e("s_mul_i32 s65, s55, 81920")
a.e("s_lshr_b32 s101, s2, 3")
a.e("s_lshl_b32 s101, s101, 2")
a.e("s_add_u32 s101, s101, s55")
a.e("s_mul_i32 s101, s101, 11008")
a.e("v_lshlrev_b32 v30, 7, v1")
a.e("v_min_u32 v31, 21, v1")
a.e("v_lshlrev_b32 v31, 7, v31")
a.e("v_add_u32 v31, 8192, v31")
a.e("s_lshl_b32 s58, s50, 4")
a.e("s_lshr_b32 s59, s56, 1")
a.e("s_lshl_b32 s59, s59, 4")
a.e("v_mov_b32 v17, s58")
a.e("v_mov_b32 v18, s59")
a.e("v_cmp_gt_u32 vcc, 32, v1")
a.e("s_nop 1")
a.e("v_cndmask_b32 v17, v18, v17, vcc")
a.e("s_waitcnt vmcnt(10)")
a.e("s_barrier")
a.e("buffer_load_dword v20, v17, s[32:35], 0 offen sc1")
a.e("buffer_load_dword v32, v30, s[24:27], s101 offen")
a.e("s_waitcnt vmcnt(2)")
a.e("s_barrier")
if 'nopf2' in OPT or 'latepf2' in OPT:
    a.e("s_waitcnt vmcnt(1)")
else:
    a.e("buffer_load_dword v33, v31, s[24:27], s101 offen")
    a.e("s_waitcnt vmcnt(2)")
a.e("v_cmp_eq_u32 vcc, 0, v20")
a.e("s_cbranch_vccz L_POLLC_DONE")
a.label("L_POLLC")
a.e("buffer_load_dword v20, v17, s[32:35], 0 offen sc1")
a.e("s_add_u32 s3, s3, 1")
a.e(f"s_cmp_gt_u32 s3, {SPIN}")
a.e("s_cbranch_scc1 L_POLLC_DONE")
a.e("s_waitcnt vmcnt(0)")
a.e("v_cmp_eq_u32 vcc, 0, v20")
a.e("s_cbranch_vccnz L_POLLC")
a.label("L_POLLC_DONE")
a.stamp(4)
a.e("s_barrier")
a.stamp(5)
if 'latepf2' in OPT: a.e("buffer_load_dword v33, v31, s[24:27], s101 offen")
a.e("s_mov_b32 s66, 0")
a.label("L_LW")
a.e("s_add_u32 s58, s98, s66")
a.e("s_and_b32 s58, s58, 3")
a.e("s_mul_i32 s58, s58, 327680")
a.e("s_add_u32 s58, s58, s65")
for i in range(10):
    a.e(f"s_add_u32 m0, s64, {i*1024}" if i else "s_mov_b32 m0, s64")
    if i: a.e("s_add_u32 s58, s58, 8192")
    else: a.e("s_nop 0")
    a.e(f"buffer_load_dwordx4 v{9 + (i & 1)}, s[24:27], s58 offen lds")
a.e(f"s_add_u32 s64, s64, {BUF}")
a.e("s_add_u32 s66, s66, 1")
a.e("s_cmp_lt_u32 s66, 4")
a.e("s_cbranch_scc1 L_LW")
a.e("s_add_u32 s58, s55, 40")
a.e("s_lshl_b32 s58, s58, 15")
for i in range(4):
    a.e(f"buffer_load_dwordx4 v[{XR+4*i}:{XR+4*i+3}], v{9 + (i & 1)}, s[24:27], s58 offen")
    if i < 3: a.e("s_add_u32 s58, s58, 8192")
a.stamp(6)
a.e("s_branch L_G2")

a.reset()
a.e(".p2align 6")
a.label("L_COMPUTE")
if 'cpf2' in OPT:
    a.e("s_lshl_b32 s58, s100, 3")
    a.e("s_add_u32 s58, s58, s54")
    a.e("s_and_b32 s58, s58, 0xfe")
    a.e("s_cmp_lg_u32 s58, 6")
    a.e("s_cbranch_scc1 L_NOCPF")
    a.e("s_getpc_b64 s[58:59]")
    a.e("s_and_b32 s58, s58, 0xffffff80")
    a.e("s_and_b32 s60, s54, 1")
    a.e("s_lshl_b32 s60, s60, 13")
    a.e("v_lshlrev_b32 v26, 7, v1")
    a.e("v_add_u32 v26, s60, v26")
    a.e("v_min_u32 v26, CODE_END_OFF2, v26")
    a.e("global_load_dword v203, v26, s[58:59]")
    a.label("L_NOCPF")
a.e("s_and_b32 s62, s55, 1")
a.e("s_lshr_b32 s63, s55, 1")
a.e("v_and_b32 v20, 15, v1")
a.e("v_lshrrev_b32 v21, 4, v1")
a.e("v_bfe_u32 v22, v20, 1, 3")
a.e("v_xor_b32 v22, v22, v21")
a.e("v_lshlrev_b32 v22, 4, v22")
a.e("v_lshl_add_u32 v22, v20, 7, v22")
a.e("s_lshl_b32 s58, s62, 13")
a.e("v_add_u32 v2, s58, v22")
a.e("v_xor_b32 v3, 64, v2")
a.e("v_mov_b32 v192, v2")
a.e("v_mov_b32 v193, v3")
a.e("v_bfe_u32 v22, v1, 2, 2")
a.e("v_lshl_add_u32 v22, v21, 3, v22")
a.e("v_mul_u32_u24 v22, 192, v22")
a.e("v_and_b32 v23, 3, v1")
a.e("v_lshl_add_u32 v22, v23, 3, v22")
a.e("v_add_u32 v22, 16384, v22")
a.e("v_and_b32 v23, 1, v21")
a.e("s_mul_i32 s64, s63, s53")
for ft in range(3):
    a.e(f"s_add_u32 s58, s64, {ft}")
    a.e("v_xor_b32 v24, s58, v23")
    a.e(f"v_lshl_add_u32 v{6+ft}, v24, 5, v22")
    a.e(f"v_mov_b32 v{194+ft}, v{6+ft}")
a.e("v_lshlrev_b32 v24, 10, v23")
a.e("v_lshrrev_b32 v25, 1, v21")
a.e("v_lshl_add_u32 v24, v25, 8, v24")
a.e("v_lshl_add_u32 v24, v20, 4, v24")
a.e("s_lshl_b32 s58, s50, 3")
a.e("s_lshl_b32 s59, s62, 2")
a.e("s_add_u32 s58, s58, s59")
a.e("s_lshl_b32 s58, s58, 10")
a.e("v_add_u32 v12, s58, v24")
a.e(f"v_mov_b32 v14, 0x{f2u(C1):08x}")
a.e(f"v_mov_b32 v15, 0x{f2u(C1):08x}")
a.e(f"s_mov_b32 s90, 0x{f2u(C2):08x}")
a.e(f"s_mov_b32 s91, 0x{f2u(C2):08x}")
a.e("s_mov_b32 s92, 1.0")
a.e("s_mov_b32 s93, 1.0")
a.e("s_lshl_b32 s60, s52, 1")
a.e("s_add_u32 s60, s60, s64")
for ft in range(3):
    a.e(f"s_add_u32 s58, s60, {ft}")
    a.e("s_lshr_b32 s59, s58, 1")
    a.e("s_lshl_b32 s59, s59, 17")
    a.e("s_and_b32 s58, s58, 1")
    a.e("s_lshl_b32 s58, s58, 9")
    a.e(f"s_add_u32 s{94+ft}, s58, s59")
a.e("s_lshl_b32 s61, s50, 1")
a.e("s_add_u32 s61, s61, s62")
a.e("s_lshl_b32 s61, s61, 7")
a.e("s_lshl_b32 s58, s51, 1")
a.e("s_add_u32 s58, s58, s63")
a.e("s_lshl_b32 s58, s58, 2")
a.e("s_add_u32 s61, s61, s58")
a.e(f"s_add_u32 s61, s61, {H_BYTES}")
a.e("v_mov_b32 v13, 0")
a.e("s_waitcnt lgkmcnt(0)")
srd(a, 20, 48, H_BYTES)
srd(a, 28, 44, 2048 * 1024)
srd(a, 32, 46, 256)
srd(a, 4, 48, H_BYTES + 4096)
if 'mallpf' in OPT:
    a.e("s_cmp_lg_u32 s54, 5")
    a.e("s_cbranch_scc1 L_NOMPF")
    srd(a, 24, 42, 1376 * 1024)
    a.e("s_mul_i32 s58, s2, 5504")
    a.e("v_min_u32 v24, 42, v1")
    a.e("v_lshlrev_b32 v24, 7, v24")
    a.e("buffer_load_dword v200, v24, s[24:27], s58 offen")
    a.label("L_NOMPF")
if 'tlbpf' in OPT:
    SH = optval('tlbsh', 17)
    a.e("s_cmp_lg_u32 s54, 6")
    a.e("s_cbranch_scc1 L_NOTLB")
    srd(a, 24, 42, 1376 * 1024)
    a.e(f"v_lshlrev_b32 v24, {SH}, v1")
    a.e("buffer_load_dword v200, v24, s[4:7], 0 offen")
    a.e("buffer_load_dword v201, v24, s[24:27], 0 offen")
    a.e("buffer_load_dword v202, v24, s[28:31], 0 offen")
    a.label("L_NOTLB")
a.e("s_lshl_b32 s97, s51, 3")
a.e("s_add_u32 s97, s97, s54")
a.e("s_cmp_lg_u32 s97, 4")
a.e("s_cbranch_scc1 L_NOCLR")
a.e("v_lshlrev_b32 v24, 2, v1")
a.e("buffer_store_dword v13, v24, s[4:7], s61 offen sc1")
a.label("L_NOCLR")
if 'noprio' not in OPT: a.e("s_setprio 3")

def WF(n, j): return 16 + 24 * (n & 1) + 4 * j
def XF(n, mi): return 64 + 16 * (n & 1) + 4 * mi
def ACC(j, mi): return 96 + 16 * j + 4 * mi
def read_x(n, mis):
    s2 = n & 1
    for mi in mis:
        a.lds_op(f"ds_read_b128 v[{XF(n,mi)}:{XF(n,mi)+3}], v{2 + s2} offset:{mi * 2048}", ("x", n, mi))
def read_w(n, j):
    s2 = n & 1
    ft, gu = j >> 1, j & 1
    for h in range(2):
        off = gu * 12288 + s2 * 6144 + h * 768
        a.lds_op(f"ds_read_b64_tr_b16 v[{WF(n,j)+2*h}:{WF(n,j)+2*h+1}], v{6 + ft} offset:{off}", ("w", n, j))
if 'nodry' not in OPT:
    a.e("s_mov_b64 vcc, -1")
    a.e("s_branch L_EPI")
a.label("L_DRYRET")
for r in range(96, 192): a.e(f"v_mov_b32 v{r}, 0")
a.e("s_mov_b32 s66, 0")
a.e("s_mov_b32 s67, 0")
a.e("s_barrier")
a.stamp(1)
read_w(0, 0)
read_x(0, range(4))
for j in range(1, 6): read_w(0, j)
BJ = 16
a.e(".p2align 3")
a.label("L_MAIN")
for n in range(2):
    reads = [("w", 0), ("x", [0, 1]), ("x", [2, 3])] + [("w", j) for j in range(1, 6)]
    slots = [BJ + k for k in range(8)] if n == 1 else [0, 2, 4, 6, 8, 12, 16, 20]
    for j in range(6):
        for mi in range(4):
            slot = 4 * j + mi
            if n == 1 and slot == 8:
                a.e(f"s_add_u32 s67, s67, {BUF}")
                a.e(f"s_cmp_eq_u32 s67, {4*BUF}")
                a.e("s_cselect_b32 s67, 0, s67")
            if n == 1 and 9 <= slot <= 13:
                k = slot - 9
                a.e(f"v_add_u32 v{[2,3,6,7,8][k]}, s67, v{192+k}")
            if n == 1 and slot == BJ:
                a.e("s_cmp_eq_u32 s66, 7")
                a.e("s_cbranch_scc1 L_CNT_RET")
                a.e("s_barrier")
                a.e("s_cmp_lg_u32 s97, 4")
                a.e("s_cbranch_scc0 L_CNT")
                a.label("L_CNT_RET")
            if mi == 0 or j == 0:
                a.wait(lds_tags=[("w", n, j), ("x", n, mi)])
            a.e(f"v_mfma_f32_16x16x32_bf16 v[{ACC(j,mi)}:{ACC(j,mi)+3}], v[{WF(n,j)}:{WF(n,j)+3}], v[{XF(n,mi)}:{XF(n,mi)+3}], v[{ACC(j,mi)}:{ACC(j,mi)+3}]")
            for k, sl in enumerate(slots):
                if sl == slot:
                    kind, arg = reads[k]
                    if kind == "w": read_w((n + 1) & 1, arg)
                    else: read_x((n + 1) & 1, arg)
a.e("s_add_u32 s66, s66, 1")
a.e("s_cmp_lt_u32 s66, 8")
a.e("s_cbranch_scc1 L_MAIN")
a.wait_all_lds()
a.e("s_barrier")
a.e("s_mov_b64 vcc, 0")
a.e("s_nop 7")
a.stamp(5)
a.label("L_EPI")
T = 16
for ft in range(3):
    if ft == 2:
        a.e("s_cmp_lt_u32 s53, 3")
        a.e("s_cbranch_scc1 L_EPI_DONE")
    for pr in range(2):
        G, U = ACC(2 * ft, 2 * pr), ACC(2 * ft + 1, 2 * pr)
        t0 = T + 16 * pr
        p0 = t0 + 8
        ps = range(0, 8, 2)
        if 'nopk' not in OPT:
            for r in ps: a.e(f"v_pk_mul_f32 v[{t0+r}:{t0+r+1}], v[{G+r}:{G+r+1}], v[{G+r}:{G+r+1}]")
            for r in ps: a.e(f"v_pk_fma_f32 v[{t0+r}:{t0+r+1}], v[{t0+r}:{t0+r+1}], s[90:91], v[14:15]")
            for r in ps: a.e(f"v_pk_mul_f32 v[{t0+r}:{t0+r+1}], v[{t0+r}:{t0+r+1}], v[{G+r}:{G+r+1}]")
            for r in range(8): a.e(f"v_exp_f32 v{t0+r}, v{t0+r}")
            for r in ps: a.e(f"v_pk_mul_f32 v[{p0+r}:{p0+r+1}], v[{G+r}:{G+r+1}], v[{U+r}:{U+r+1}]")
            for r in ps: a.e(f"v_pk_add_f32 v[{t0+r}:{t0+r+1}], v[{t0+r}:{t0+r+1}], s[92:93]")
            for r in range(8): a.e(f"v_rcp_f32 v{t0+r}, v{t0+r}")
            a.e("s_nop 0")
            for r in ps: a.e(f"v_pk_mul_f32 v[{t0+r}:{t0+r+1}], v[{t0+r}:{t0+r+1}], v[{p0+r}:{p0+r+1}]")
        else:
            rs = range(8)
            for r in rs: a.e(f"v_mul_f32 v{t0+r}, v{G+r}, v{G+r}")
            for r in rs: a.e(f"v_fmamk_f32 v{t0+r}, v{t0+r}, 0x{f2u(C2):08x}, v14")
            for r in rs: a.e(f"v_mul_f32 v{t0+r}, v{t0+r}, v{G+r}")
            for r in rs: a.e(f"v_exp_f32 v{t0+r}, v{t0+r}")
            for r in rs: a.e(f"v_mul_f32 v{p0+r}, v{G+r}, v{U+r}")
            for r in rs: a.e(f"v_add_f32 v{t0+r}, 1.0, v{t0+r}")
            for r in rs: a.e(f"v_rcp_f32 v{t0+r}, v{t0+r}")
            a.e("s_nop 0")
            for r in rs: a.e(f"v_mul_f32 v{t0+r}, v{t0+r}, v{p0+r}")
        O = 64 + 8 * ft + 4 * pr
        for i in range(4): a.e(f"v_cvt_pk_bf16_f32 v{O+i}, v{t0+2*i}, v{t0+2*i+1}")
        a.e("s_nop 1")
        a.e(f"v_permlane16_swap_b32 v{O}, v{O+2}")
        a.e(f"v_permlane16_swap_b32 v{O+1}, v{O+3}")
        a.e(f"s_cbranch_vccnz L_SK{ft}{pr}")
        a.e(f"buffer_store_dwordx4 v[{O}:{O+3}], v12, s[20:23], s{94+ft} offen offset:{pr*2048} sc1")
        a.label(f"L_SK{ft}{pr}")
a.label("L_EPI_DONE")
a.e("s_cbranch_vccnz L_DRYRET")
a.stamp(6)
a.e("s_waitcnt vmcnt(0)")
a.e("v_mov_b32 v88, 1")
a.e("s_mov_b64 exec, 1")
a.e("buffer_store_dword v88, v13, s[4:7], s61 offen sc1")
a.e("s_mov_b64 exec, -1")
a.e("s_setprio 0")

a.reset()
a.label("L_G2")
a.e("s_lshr_b32 s63, s54, 2")
a.e("v_lshrrev_b32 v21, 4, v1")
a.e("v_and_b32 v23, 1, v21")
a.e("v_bfe_u32 v22, v1, 2, 2")
a.e("v_lshl_add_u32 v22, v21, 3, v22")
a.e("v_lshlrev_b32 v22, 7, v22")
a.e("v_and_b32 v24, 1, v1")
a.e("v_lshl_add_u32 v22, v24, 3, v22")
a.e("v_bfe_u32 v24, v1, 1, 1")
a.e("v_lshl_add_u32 v22, v24, 4, v22")
a.e(f"s_mul_i32 s58, s55, {BUF}")
a.e("v_add_u32 v22, s58, v22")
a.e("v_bfe_u32 v24, v1, 3, 1")
a.e("v_lshl_add_u32 v24, v23, 1, v24")
a.e("v_lshlrev_b32 v24, 1, v24")
for j in range(4):
    a.e(f"v_xor_b32 v25, {2*j}, v24")
    a.e(f"v_lshl_add_u32 v{2+j}, v25, 4, v22")
a.e("v_lshlrev_b32 v14, 4, v1")
a.e("s_mov_b32 s65, s57")
a.e("s_mov_b32 s62, s65")
a.e("s_lshl_b32 s60, s65, 12")
a.e("s_add_u32 s58, s58, s60")
a.e("v_add_u32 v7, s58, v14")
a.e("s_add_u32 s64, s55, s98")
a.e("s_and_b32 s64, s64, 3")
a.e("s_mul_i32 s64, s64, 10")
a.e(f"s_mul_i32 s58, s55, {BUF}")
a.e("s_lshl_b32 s59, s63, 13")
a.e("s_add_u32 s58, s58, s59")
a.e("v_add_u32 v15, s58, v14")
a.e("s_lshl_b32 s58, s56, 12")
a.e("s_lshl_b32 s59, s63, 11")
a.e("s_add_u32 s58, s58, s59")
a.e("v_add_u32 v6, s58, v14")
a.e("v_and_b32 v24, 31, v1")
a.e("v_lshlrev_b32 v13, 2, v24")
a.e("v_lshrrev_b32 v24, 1, v24")
a.e("v_mul_u32_u24 v25, 43, v24")
a.e("v_add_u32 v26, 43, v25")
a.e("v_lshrrev_b32 v25, 4, v25")
a.e("v_lshrrev_b32 v26, 4, v26")
a.e("s_add_u32 s58, s64, 10")
a.e("v_cmp_gt_u32 s[90:91], s58, v25")
a.e("v_cmp_lt_u32 s[92:93], s64, v26")
a.e("s_and_b64 s[90:91], s[90:91], s[92:93]")
a.e("v_cmp_eq_u32 s[92:93], 15, v24")
a.e("s_or_b64 s[90:91], s[90:91], s[92:93]")
a.e("s_lshl_b32 s61, s56, 7")
a.e(f"s_add_u32 s61, s61, {H_BYTES}")
def HB(i, mi): return 96 + (i & 1) * 8 + 4 * mi
def AFR(i, j): return 16 + (i & 1) * 16 + 4 * j
def ACC2(j, mi): return 48 + 16 * mi + 4 * j
def h_loads(i):
    a.e("s_add_u32 s58, s64, s65")
    a.e("s_add_u32 s59, s70, s72")
    a.e("s_cmp_gt_u32 s70, 10")
    a.e("s_cselect_b32 s59, 43, s59")
    a.e("s_cmp_lt_u32 s70, 10")
    a.e("s_cselect_b32 s58, s58, s59")
    a.e("s_lshl_b32 s58, s58, 17")
    a.e("s_add_u32 s70, s70, 1")
    a.e("s_add_u32 s65, s65, 1")
    a.e("s_cmp_eq_u32 s65, 10")
    a.e("s_cselect_b32 s65, 0, s65")
    for mi in range(2):
        a.vm_op(f"buffer_load_dwordx4 v[{HB(i,mi)}:{HB(i,mi)+3}], v6, s[20:23], s58 offen offset:{mi*1024} sc1", ("h", i))
def a_addr():
    a.e("s_lshl_b32 s59, s62, 12")
    a.e("s_add_u32 s62, s62, 1")
    a.e("s_cmp_eq_u32 s62, 10")
    a.e("s_cselect_b32 s62, 0, s62")
    for j in range(4): a.e(f"v_add_u32 v{8+j}, s59, v{2+j}")
def a_read(i, j):
    for hh in range(2):
        a.lds_op(f"ds_read_b64_tr_b16 v[{AFR(i,j)+2*hh}:{AFR(i,j)+2*hh+1}], v{8+j} offset:{hh*512}", ("a", i, j))
a.e("s_mov_b32 s70, 0")
a.e("s_add_u32 s72, s55, 30")
a.e("s_mov_b32 s71, 0")
for r in range(48, 64): a.e(f"v_mov_b32 v{r}, 0")
a_addr()
a.e("s_waitcnt vmcnt(0)")
for r in range(64, 80): a.e(f"v_mov_b32 v{r}, 0")
a.e("s_barrier")
a.stamp(7)
for j in range(4): a_read(0, j)
a.wait_all_lds()
a.e("s_barrier")
a.e("s_cmp_ge_u32 s54, 4")
a.e("s_cbranch_scc1 L_NOXW")
for q in range(4):
    a.e(f"ds_write_b128 v7, v[{XR+4*q}:{XR+4*q+3}] offset:{q*1024}")
a.e("s_waitcnt lgkmcnt(0)")
a.label("L_NOXW")
a.e("s_barrier")
a.label("L_POLL")
a.e("buffer_load_dword v12, v13, s[4:7], s61 offen sc1")
a.e("s_add_u32 s3, s3, 1")
a.e(f"s_cmp_gt_u32 s3, {SPIN}")
a.e("s_cbranch_scc1 L_POLLDONE")
a.e("s_waitcnt vmcnt(0)")
a.e("v_cmp_ne_u32 vcc, 1, v12")
a.e("s_and_b64 vcc, vcc, s[90:91]")
a.e("s_cbranch_vccnz L_POLL")
a.label("L_POLLDONE")
a.stamp(8)
a.vm = []
h_loads(0); h_loads(1)
a.lds = [("a", 0, j) for j in range(4) for _ in range(2)]
a.e(".p2align 3")
a.label("L_G2LOOP")
for i in range(2):
    a_addr()
    a.wait(vm_tags=[("h", i)])
    for j in range(4):
        a.wait(lds_tags=[("a", i, j)])
        for mi in range(2):
            a.e(f"v_mfma_f32_16x16x32_bf16 v[{ACC2(j,mi)}:{ACC2(j,mi)+3}], v[{AFR(i,j)}:{AFR(i,j)+3}], v[{HB(i,mi)}:{HB(i,mi)+3}], v[{ACC2(j,mi)}:{ACC2(j,mi)+3}]")
            if mi == 0: a_read((i + 1) & 1, j)
    if i == 0:
        a.e("s_cmp_eq_u32 s71, 5")
        a.e("s_cbranch_scc1 L_G2DONE")
    h_loads(i)
a.e("s_add_u32 s71, s71, 1")
a.e("s_branch L_G2LOOP")
a.label("L_G2DONE")
a.e("s_waitcnt vmcnt(0) lgkmcnt(0)")
a.reset()
a.stamp(10)
a.e("s_barrier")
a.e("s_nop 7")
for mi in range(2):
    for j in range(4):
        a.e(f"ds_write_b128 v15, v[{ACC2(j,mi)}:{ACC2(j,mi)+3}] offset:{mi*4096 + j*1024}")
a.e("s_lshl_b32 s58, s55, 12")
a.e("s_lshl_b32 s59, s63, 11")
a.e("s_add_u32 s58, s58, s59")
a.e("v_add_u32 v8, s58, v14")
a.e(f"v_add_u32 v9, {2*BUF}, v8")
a.e("s_lshl_b32 s58, s56, 6")
a.e("s_lshl_b32 s59, s55, 4")
a.e("s_add_u32 s58, s58, s59")
a.e("s_lshl_b32 s58, s58, 10")
a.e("s_lshl_b32 s59, s57, 7")
a.e("s_add_u32 s58, s58, s59")
a.e("s_lshl_b32 s59, s63, 6")
a.e("s_add_u32 s58, s58, s59")
a.e("v_and_b32 v10, 15, v1")
a.e("v_lshlrev_b32 v10, 10, v10")
a.e("v_bfe_u32 v11, v1, 4, 1")
a.e("v_lshl_add_u32 v10, v11, 5, v10")
a.e("v_lshrrev_b32 v11, 5, v1")
a.e("v_lshl_add_u32 v10, v11, 4, v10")
a.wait_all_lds()
a.e("s_barrier")
for src in range(4):
    for jj in range(2):
        r = 96 + 8 * src + 4 * jj
        a.e(f"ds_read_b128 v[{r}:{r+3}], v{8 + (src >> 1)} offset:{(src & 1)*BUF + jj*1024}")
a.e("s_waitcnt lgkmcnt(4)")
for k in range(0, 8, 2): a.e(f"v_pk_add_f32 v[{96+k}:{97+k}], v[{96+k}:{97+k}], v[{104+k}:{105+k}]")
a.e("s_waitcnt lgkmcnt(0)")
for k in range(0, 8, 2): a.e(f"v_pk_add_f32 v[{112+k}:{113+k}], v[{112+k}:{113+k}], v[{120+k}:{121+k}]")
for k in range(0, 8, 2): a.e(f"v_pk_add_f32 v[{96+k}:{97+k}], v[{96+k}:{97+k}], v[{112+k}:{113+k}]")
for k in range(4): a.e(f"v_cvt_pk_bf16_f32 v{16+k}, v{96+2*k}, v{96+2*k+1}")
a.e("s_nop 1")
a.e("v_permlane16_swap_b32 v16, v18")
a.e("v_permlane16_swap_b32 v17, v19")
OUTF = ' sc1' if 'outsc1' in OPT else ' nt' if 'outnt' in OPT else ''
a.e(f"buffer_store_dwordx4 v[16:19], v10, s[28:31], s58 offen{OUTF}")
a.dump_stamps(11)
a.label("L_END")
a.e("s_endpgm")
a.label("L_CNT")
a.e("s_mov_b32 s97, 0")
a.e("v_mov_b32 v197, 1")
a.e("s_lshl_b32 s58, s50, 4")
a.e("s_waitcnt vmcnt(0)")
a.e("s_mov_b64 exec, 1")
a.e("buffer_store_dword v197, v13, s[32:35], s58 offen sc1")
a.e("s_mov_b64 exec, -1")
a.e("s_branch L_CNT_RET")
a.label("L_CODE_END")

HDR = open("standalone__glu_gated_geglu__prompt.s.ref").read().split("; Override")[0]
out = HDR + "; @launch grid=(256,1,1) block=(512,1,1) lds=163840\n"
out += f'.amdgcn_target "amdgcn-amd-amdhsa--gfx950"\n.text\n.globl {KN}\n.p2align 8\n.type {KN},@function\n'
out += f".set CODE_END_OFF, L_CODE_END - {KN} - 1024\n"
out += ".set CODE_END_OFF2, L_CODE_END - L_COMPUTE - 64\n"
out += a.text() + f"""
.section .rodata,"a"
.p2align 6
.amdhsa_kernel {KN}
  .amdhsa_next_free_vgpr 256
  .amdhsa_next_free_sgpr 102
  .amdhsa_accum_offset 256
  .amdhsa_group_segment_fixed_size 0
  .amdhsa_kernarg_size 56
  .amdhsa_user_sgpr_count 2
  .amdhsa_user_sgpr_kernarg_segment_ptr 1
  .amdhsa_system_sgpr_workgroup_id_x 1
.end_amdhsa_kernel
"""
open(sys.argv[1], "w").write(out)
```

```python
import sys, struct
OPT = set(sys.argv[2:])
DIAG = 'diag' in OPT
KN = "standalone__glu_gated_geglu__prompt_kernel"
def f2u(x): return struct.unpack("<I", struct.pack("<f", x))[0]

class Asm:
    def __init__(self):
        self.lines = []; self.lds = []; self.vm = []; self.nst = 0
    def e(self, s): self.lines.append("    " + s)
    def label(self, s): self.lines.append(s + ":")
    def c(self, s): self.lines.append("    ; " + s)
    def reset(self): self.lds = []; self.vm = []
    def lds_op(self, s, tag=None): self.e(s); self.lds.append(tag)
    def vm_op(self, s, tag=None): self.e(s); self.vm.append(tag)
    def _need(self, q, tags):
        last = -1
        for i, t in enumerate(q):
            if t in tags: last = i
        return last
    def wait(self, lds_tags=(), vm_tags=()):
        parts = []
        if vm_tags:
            last = self._need(self.vm, vm_tags)
            if last >= 0:
                n = len(self.vm) - 1 - last
                assert n <= 63, n
                parts.append(f"vmcnt({n})"); self.vm = self.vm[last + 1:]
        if lds_tags:
            last = self._need(self.lds, lds_tags)
            if last >= 0:
                n = min(len(self.lds) - 1 - last, 15)
                parts.append(f"lgkmcnt({n})")
                self.lds = self.lds[len(self.lds) - n:] if n else []
        if parts: self.e("s_waitcnt " + " ".join(parts))
    def wait_all_lds(self): self.e("s_waitcnt lgkmcnt(0)"); self.lds = []
    def wait_all_vm(self): self.e("s_waitcnt vmcnt(0)"); self.vm = []
    def text(self): return "\n".join(self.lines)
    def stamp(self, k):
        if not DIAG: return
        op = "s_memtime" if 'clk' in OPT else "s_memrealtime"
        self.e(f"{op} s[{68+2*k}:{69+2*k}]")
        self.e("s_waitcnt lgkmcnt(0)"); self.lds = []
    def dump_stamps(self, n):
        if not DIAG: return
        self.e("s_waitcnt vmcnt(0)")
        self.e("s_memrealtime s[66:67]")
        self.e("s_waitcnt lgkmcnt(0)")
        self.e("s_mov_b32 s22, 0x10000000")
        self.e("s_lshl_b32 s64, s2, 4"); self.e("s_add_u32 s64, s64, s54"); self.e("s_lshl_b32 s64, s64, 7")
        self.e("s_add_u32 s64, s64, 0x4000000")
        self.e("v_mov_b32 v1, 0")
        for k in range(n):
            self.e(f"v_mov_b32 v2, s{68+2*k}")
            self.e(f"buffer_store_dword v2, v1, s[20:23], s64 offen offset:{4*k}")
        self.e("v_mov_b32 v3, s66")
        self.e(f"buffer_store_dword v3, v1, s[20:23], s64 offen offset:{4*n}")
        self.e("v_mov_b32 v3, s3")
        self.e(f"buffer_store_dword v3, v1, s[20:23], s64 offen offset:120")

H_BYTES = 43 * 128 * 1024
C1 = -2.0 * 1.4426950408889634 * 0.7978845608028654
C2 = C1 * 0.044715
BUF = 40960
SPIN = 0x40000
HOFF = [int(o[5:]) for o in OPT if o.startswith('hoff=')]
HOFF = (HOFF[0] << 20) if HOFF else 0
def srd(a, d, lo, nbytes):
    if lo == 48 and HOFF:
        a.e(f"s_add_u32 s{d}, s{lo}, {HOFF}")
        a.e(f"s_addc_u32 s{d+1}, s{lo+1}, 0")
        a.e(f"s_and_b32 s{d+1}, s{d+1}, 0xffff")
        a.e(f"s_mov_b32 s{d+2}, {nbytes}")
        a.e(f"s_mov_b32 s{d+3}, 0x20000")
        return
    a.e(f"s_mov_b32 s{d}, s{lo}")
    a.e(f"s_and_b32 s{d+1}, s{lo+1}, 0xffff")
    a.e(f"s_mov_b32 s{d+2}, {nbytes}")
    a.e(f"s_mov_b32 s{d+3}, 0x20000")

a = Asm()
a.label(KN)
a.e("s_cmp_ge_u32 s2, 256")
a.e("s_cbranch_scc1 L_END")
a.e("s_load_dwordx8 s[36:43], s[0:1], 0")
a.e("s_load_dwordx4 s[44:47], s[0:1], 32")
a.e("s_load_dwordx2 s[48:49], s[0:1], 48")
if DIAG:
    a.e("s_memrealtime s[68:69]")
    for k in range(1, 15): a.e(f"s_mov_b32 s{68+2*k}, 0")
a.e("v_lshrrev_b32 v2, 6, v0")
a.e("v_and_b32 v1, 63, v0")
a.e("s_and_b32 s58, s2, 7")
a.e("v_readfirstlane_b32 s54, v2")
a.e("s_lshr_b32 s59, s2, 3")
a.e("s_and_b32 s50, s58, 1")
a.e("s_lshl_b32 s50, s50, 3")
a.e("s_and_b32 s57, s59, 7")
a.e("s_add_u32 s50, s50, s57")
a.e("s_lshr_b32 s61, s59, 3")
a.e("s_and_b32 s55, s54, 3")
def late_scalars():
    a.e("s_and_b32 s58, s2, 7")
    a.e("s_lshr_b32 s51, s58, 1")
    a.e("s_lshl_b32 s51, s51, 2")
    a.e("s_add_u32 s51, s51, s61")
    a.e("s_mul_i32 s52, s51, 43")
    a.e("s_add_u32 s53, s52, 43")
    a.e("s_lshr_b32 s52, s52, 4")
    a.e("s_lshr_b32 s53, s53, 4")
    a.e("s_sub_u32 s53, s53, s52")
    a.e("s_lshl_b32 s56, s58, 2")
    a.e("s_add_u32 s56, s56, s61")
    a.e("s_mov_b32 s98, s56")
    a.e("s_mov_b32 s3, 0")
a.e("s_cmp_ge_u32 s54, 4")
a.e("s_cbranch_scc1 L_COMPUTE")

a.c("LOADER")
a.e("s_lshl_b32 s60, s61, 1")
a.e("s_add_u32 s60, s60, s57")
a.e("v_lshrrev_b32 v20, 3, v1")
a.e("v_lshrrev_b32 v21, 4, v1")
a.e("v_and_b32 v22, 7, v1")
a.e("v_xor_b32 v24, v22, v21")
a.e("v_xor_b32 v23, 4, v24")
a.e("s_lshl_b32 s58, s50, 7")
a.e("s_lshl_b32 s59, s55, 5")
a.e("s_add_u32 s58, s58, s59")
a.e("s_lshl_b32 s58, s58, 10")
a.e("v_lshlrev_b32 v20, 10, v20")
a.e("v_add_u32 v25, s58, v20")
a.e("v_lshl_add_u32 v2, v24, 4, v25")
a.e("v_lshl_add_u32 v3, v23, 4, v25")
a.e("v_add_u32 v3, 8192, v3")
a.e("v_add_u32 v4, 16384, v2")
a.e("v_add_u32 v5, 16384, v3")
a.e("s_lshl_b32 s62, s55, 12")
a.e("s_and_b32 s59, s60, 7")
a.e("s_lshl_b32 s58, s59, 7")
a.e(f"s_mov_b32 s10, {2048*1024}")
a.e("s_mov_b32 s11, 0x20000")
a.e("s_mov_b32 m0, s62")
a.e("s_waitcnt lgkmcnt(0)")
a.e("s_mov_b32 s8, s36")
a.e("s_and_b32 s9, s37, 0xffff")
for t in range(4):
    if t:
        a.e(f"s_add_u32 m0, s62, {t*1024}")
        a.e("s_nop 0")
    a.e(f"buffer_load_dwordx4 v{2+t}, s[8:11], s58 offen lds")
late_scalars()
a.e("s_mul_i32 s58, s55, 44032")
a.e("s_lshl_b32 s59, s52, 6")
a.e("s_add_u32 s58, s58, s59")
a.e("s_movk_i32 s59, 2752")
for i in range(3):
    a.e(f"v_add_u32 v26, {64*i}, v1")
    a.e("v_mul_u32_u24 v27, 171, v26")
    a.e("v_lshrrev_b32 v27, 11, v27")
    a.e("v_mul_u32_u24 v28, 12, v27")
    a.e("v_sub_u32 v28, v26, v28")
    a.e("v_lshrrev_b32 v29, 2, v27")
    a.e("v_and_b32 v29, 2, v29")
    a.e("v_xor_b32 v28, v28, v29")
    a.e("v_mul_u32_u24 v27, s59, v27")
    a.e("v_lshl_add_u32 v27, v28, 4, v27")
    a.e(f"v_add_u32 v{6+i}, s58, v27")
a.e("s_mul_i32 s63, s55, 3072")
a.e("s_add_u32 s63, s63, 16384")
srd(a, 12, 38, 512 * 2752)
srd(a, 16, 40, 512 * 2752)
def optval(name, d):
    v = [o[len(name)+1:] for o in OPT if o.startswith(name + '=')]
    return int(v[0]) if v else d
XR = 80
a.e("s_mov_b32 s66, 0")
a.e("s_mov_b32 s67, 0")
a.e("s_and_b32 s59, s60, 7")
a.e("s_mul_i32 s59, s59, 176128")
a.e("s_mov_b32 s65, s63")
a.e("s_branch L_LD_W")
a.label("L_LD")
a.e("s_cmp_lt_u32 s66, 1" if 'startbar' in OPT else "s_cmp_lt_u32 s66, 2")
a.e("s_cbranch_scc1 L_LD_ISSUE")
a.e("s_waitcnt vmcnt(10)")
a.e("s_barrier")
a.label("L_LD_ISSUE")
a.e("s_add_u32 s59, s60, s66")
a.e("s_and_b32 s59, s59, 7")
a.e("s_lshl_b32 s58, s59, 7")
a.e("s_mul_i32 s59, s59, 176128")
a.e("s_add_u32 s64, s62, s67")
a.e("s_add_u32 s65, s63, s67")
for t in range(4):
    a.e(f"s_add_u32 m0, s64, {t*1024}" if t else "s_mov_b32 m0, s64")
    a.e("s_nop 0")
    a.e(f"buffer_load_dwordx4 v{2+t}, s[8:11], s58 offen lds")
a.label("L_LD_W")
for gu in range(2):
    for i in range(3):
        a.e(f"s_add_u32 m0, s65, {gu*12288 + i*1024}" if (gu or i) else "s_mov_b32 m0, s65")
        a.e("s_nop 0")
        a.e(f"buffer_load_dwordx4 v{6+i}, s[{12+4*gu}:{15+4*gu}], s59 offen lds")
a.e(f"s_add_u32 s67, s67, {BUF}")
a.e(f"s_cmp_eq_u32 s67, {4*BUF}")
a.e("s_cselect_b32 s67, 0, s67")
a.e("s_add_u32 s66, s66, 1")
a.e("s_cmp_lt_u32 s66, 8")
a.e("s_cbranch_scc1 L_LD")
a.e("v_and_b32 v21, 1, v21")
a.e("v_lshlrev_b32 v21, 1, v21")
a.e("v_xor_b32 v22, v22, v21")
a.e("s_lshl_b32 s58, s57, 7")
a.e("v_add_u32 v20, s58, v20")
a.e("v_lshl_add_u32 v9, v22, 4, v20")
a.e("v_xor_b32 v22, 4, v22")
a.e("v_lshl_add_u32 v10, v22, 4, v20")
srd(a, 24, 42, 1376 * 1024)
srd(a, 20, 48, H_BYTES)
srd(a, 28, 44, 2048 * 1024)
srd(a, 32, 46, 256)
srd(a, 4, 48, H_BYTES + 4096)
a.e("s_mul_i32 s64, s55, 10240")
a.e("s_mul_i32 s65, s55, 81920")
a.e("s_lshr_b32 s101, s2, 3")
a.e("s_lshl_b32 s101, s101, 2")
a.e("s_add_u32 s101, s101, s55")
a.e("s_mul_i32 s101, s101, 11008")
a.e("v_lshlrev_b32 v30, 7, v1")
a.e("v_min_u32 v31, 21, v1")
a.e("v_lshlrev_b32 v31, 7, v31")
a.e("v_add_u32 v31, 8192, v31")
a.e("s_lshl_b32 s58, s50, 4")
a.e("s_lshr_b32 s59, s56, 1")
a.e("s_lshl_b32 s59, s59, 4")
a.e("v_mov_b32 v17, s58")
a.e("v_mov_b32 v18, s59")
a.e("v_cmp_gt_u32 vcc, 32, v1")
a.e("s_nop 1")
a.e("v_cndmask_b32 v17, v18, v17, vcc")
a.e("s_waitcnt vmcnt(10)")
a.e("s_barrier")
a.e("buffer_load_dword v20, v17, s[32:35], 0 offen sc1")
a.e("buffer_load_dword v32, v30, s[24:27], s101 offen")
a.e("s_waitcnt vmcnt(2)")
a.e("s_barrier")
if 'nopf2' in OPT or 'latepf2' in OPT:
    a.e("s_waitcnt vmcnt(1)")
else:
    a.e("buffer_load_dword v33, v31, s[24:27], s101 offen")
    a.e("s_waitcnt vmcnt(2)")
a.e("v_cmp_eq_u32 vcc, 0, v20")
a.e("s_cbranch_vccz L_POLLC_DONE")
a.label("L_POLLC")
a.e("buffer_load_dword v20, v17, s[32:35], 0 offen sc1")
a.e("s_add_u32 s3, s3, 1")
a.e(f"s_cmp_gt_u32 s3, {SPIN}")
a.e("s_cbranch_scc1 L_POLLC_DONE")
a.e("s_waitcnt vmcnt(0)")
a.e("v_cmp_eq_u32 vcc, 0, v20")
a.e("s_cbranch_vccnz L_POLLC")
a.label("L_POLLC_DONE")
a.stamp(4)
a.e("s_barrier")
a.stamp(5)
if 'latepf2' in OPT: a.e("buffer_load_dword v33, v31, s[24:27], s101 offen")
a.e("s_mov_b32 s66, 0")
a.label("L_LW")
a.e("s_add_u32 s58, s98, s66")
a.e("s_and_b32 s58, s58, 3")
a.e("s_mul_i32 s58, s58, 327680")
a.e("s_add_u32 s58, s58, s65")
for i in range(10):
    a.e(f"s_add_u32 m0, s64, {i*1024}" if i else "s_mov_b32 m0, s64")
    if i: a.e("s_add_u32 s58, s58, 8192")
    else: a.e("s_nop 0")
    a.e(f"buffer_load_dwordx4 v{9 + (i & 1)}, s[24:27], s58 offen lds")
a.e(f"s_add_u32 s64, s64, {BUF}")
a.e("s_add_u32 s66, s66, 1")
a.e("s_cmp_lt_u32 s66, 4")
a.e("s_cbranch_scc1 L_LW")
a.e("s_add_u32 s58, s55, 40")
a.e("s_lshl_b32 s58, s58, 15")
for i in range(4):
    a.e(f"buffer_load_dwordx4 v[{XR+4*i}:{XR+4*i+3}], v{9 + (i & 1)}, s[24:27], s58 offen")
    if i < 3: a.e("s_add_u32 s58, s58, 8192")
a.stamp(6)
a.e("s_branch L_G2")

a.reset()
a.e(".p2align 6")
a.label("L_COMPUTE")
late_scalars()
a.e("s_mov_b32 s100, s57")
if 'cpf2' in OPT:
    a.e("s_lshl_b32 s58, s100, 3")
    a.e("s_add_u32 s58, s58, s54")
    a.e("s_and_b32 s58, s58, 0xfe")
    a.e("s_cmp_lg_u32 s58, 6")
    a.e("s_cbranch_scc1 L_NOCPF")
    a.e("s_getpc_b64 s[58:59]")
    a.e("s_and_b32 s58, s58, 0xffffff80")
    a.e("s_and_b32 s60, s54, 1")
    a.e("s_lshl_b32 s60, s60, 13")
    a.e("v_lshlrev_b32 v26, 7, v1")
    a.e("v_add_u32 v26, s60, v26")
    a.e("v_min_u32 v26, CODE_END_OFF2, v26")
    a.e("global_load_dword v203, v26, s[58:59]")
    a.label("L_NOCPF")
a.e("s_and_b32 s62, s55, 1")
a.e("s_lshr_b32 s63, s55, 1")
a.e("v_and_b32 v20, 15, v1")
a.e("v_lshrrev_b32 v21, 4, v1")
a.e("v_bfe_u32 v22, v20, 1, 3")
a.e("v_xor_b32 v22, v22, v21")
a.e("v_lshlrev_b32 v22, 4, v22")
a.e("v_lshl_add_u32 v22, v20, 7, v22")
a.e("s_lshl_b32 s58, s62, 13")
a.e("v_add_u32 v2, s58, v22")
a.e("v_xor_b32 v3, 64, v2")
a.e("v_mov_b32 v192, v2")
a.e("v_mov_b32 v193, v3")
a.e("v_bfe_u32 v22, v1, 2, 2")
a.e("v_lshl_add_u32 v22, v21, 3, v22")
a.e("v_mul_u32_u24 v22, 192, v22")
a.e("v_and_b32 v23, 3, v1")
a.e("v_lshl_add_u32 v22, v23, 3, v22")
a.e("v_add_u32 v22, 16384, v22")
a.e("v_and_b32 v23, 1, v21")
a.e("s_mul_i32 s64, s63, s53")
for ft in range(3):
    a.e(f"s_add_u32 s58, s64, {ft}")
    a.e("v_xor_b32 v24, s58, v23")
    a.e(f"v_lshl_add_u32 v{6+ft}, v24, 5, v22")
    a.e(f"v_mov_b32 v{194+ft}, v{6+ft}")
a.e("v_lshlrev_b32 v24, 10, v23")
a.e("v_lshrrev_b32 v25, 1, v21")
a.e("v_lshl_add_u32 v24, v25, 8, v24")
a.e("v_lshl_add_u32 v24, v20, 4, v24")
a.e("s_lshl_b32 s58, s50, 3")
a.e("s_lshl_b32 s59, s62, 2")
a.e("s_add_u32 s58, s58, s59")
a.e("s_lshl_b32 s58, s58, 10")
a.e("v_add_u32 v12, s58, v24")
a.e(f"v_mov_b32 v14, 0x{f2u(C1):08x}")
a.e(f"v_mov_b32 v15, 0x{f2u(C1):08x}")
a.e(f"s_mov_b32 s90, 0x{f2u(C2):08x}")
a.e(f"s_mov_b32 s91, 0x{f2u(C2):08x}")
a.e("s_mov_b32 s92, 1.0")
a.e("s_mov_b32 s93, 1.0")
a.e("s_lshl_b32 s60, s52, 1")
a.e("s_add_u32 s60, s60, s64")
for ft in range(3):
    a.e(f"s_add_u32 s58, s60, {ft}")
    a.e("s_lshr_b32 s59, s58, 1")
    a.e("s_lshl_b32 s59, s59, 17")
    a.e("s_and_b32 s58, s58, 1")
    a.e("s_lshl_b32 s58, s58, 9")
    a.e(f"s_add_u32 s{94+ft}, s58, s59")
a.e("s_lshl_b32 s61, s50, 1")
a.e("s_add_u32 s61, s61, s62")
a.e("s_lshl_b32 s61, s61, 7")
a.e("s_lshl_b32 s58, s51, 1")
a.e("s_add_u32 s58, s58, s63")
a.e("s_lshl_b32 s58, s58, 2")
a.e("s_add_u32 s61, s61, s58")
a.e(f"s_add_u32 s61, s61, {H_BYTES}")
a.e("v_mov_b32 v13, 0")
a.e("s_waitcnt lgkmcnt(0)")
srd(a, 20, 48, H_BYTES)
srd(a, 28, 44, 2048 * 1024)
srd(a, 32, 46, 256)
srd(a, 4, 48, H_BYTES + 4096)
if 'mallpf' in OPT:
    a.e("s_cmp_lg_u32 s54, 5")
    a.e("s_cbranch_scc1 L_NOMPF")
    srd(a, 24, 42, 1376 * 1024)
    a.e("s_mul_i32 s58, s2, 5504")
    a.e("v_min_u32 v24, 42, v1")
    a.e("v_lshlrev_b32 v24, 7, v24")
    a.e("buffer_load_dword v200, v24, s[24:27], s58 offen")
    a.label("L_NOMPF")
if 'tlbpf' in OPT:
    SH = optval('tlbsh', 17)
    a.e("s_cmp_lg_u32 s54, 6")
    a.e("s_cbranch_scc1 L_NOTLB")
    srd(a, 24, 42, 1376 * 1024)
    a.e(f"v_lshlrev_b32 v24, {SH}, v1")
    a.e("buffer_load_dword v200, v24, s[4:7], 0 offen")
    a.e("buffer_load_dword v201, v24, s[24:27], 0 offen")
    a.e("buffer_load_dword v202, v24, s[28:31], 0 offen")
    a.label("L_NOTLB")
a.e("s_lshl_b32 s97, s51, 3")
a.e("s_add_u32 s97, s97, s54")
a.e("s_cmp_lg_u32 s97, 4")
a.e("s_cbranch_scc1 L_NOCLR")
a.e("v_lshlrev_b32 v24, 2, v1")
a.e("buffer_store_dword v13, v24, s[4:7], s61 offen sc1")
a.label("L_NOCLR")
if 'noprio' not in OPT: a.e("s_setprio 3")

def WF(n, j): return 16 + 24 * (n & 1) + 4 * j
def XF(n, mi): return 64 + 16 * (n & 1) + 4 * mi
def ACC(j, mi): return 96 + 16 * j + 4 * mi
def read_x(n, mis):
    s2 = n & 1
    for mi in mis:
        a.lds_op(f"ds_read_b128 v[{XF(n,mi)}:{XF(n,mi)+3}], v{2 + s2} offset:{mi * 2048}", ("x", n, mi))
def read_w(n, j):
    s2 = n & 1
    ft, gu = j >> 1, j & 1
    for h in range(2):
        off = gu * 12288 + s2 * 6144 + h * 768
        a.lds_op(f"ds_read_b64_tr_b16 v[{WF(n,j)+2*h}:{WF(n,j)+2*h+1}], v{6 + ft} offset:{off}", ("w", n, j))
for r in range(96, 192): a.e(f"v_mov_b32 v{r}, 0")
a.e("s_mov_b32 s66, 0")
a.e("s_mov_b32 s67, 0")
a.e("s_barrier")
a.stamp(1)
read_w(0, 0)
read_x(0, range(4))
for j in range(1, 6): read_w(0, j)
BJ = 16
a.e(".p2align 3")
a.label("L_MAIN")
for n in range(2):
    reads = [("w", 0), ("x", [0, 1]), ("x", [2, 3])] + [("w", j) for j in range(1, 6)]
    slots = [BJ + k for k in range(8)] if n == 1 else [0, 2, 4, 6, 8, 12, 16, 20]
    for j in range(6):
        for mi in range(4):
            slot = 4 * j + mi
            if n == 1 and slot == 8:
                a.e(f"s_add_u32 s67, s67, {BUF}")
                a.e(f"s_cmp_eq_u32 s67, {4*BUF}")
                a.e("s_cselect_b32 s67, 0, s67")
            if n == 1 and 9 <= slot <= 13:
                k = slot - 9
                a.e(f"v_add_u32 v{[2,3,6,7,8][k]}, s67, v{192+k}")
            if n == 1 and slot == BJ:
                a.e("s_cmp_eq_u32 s66, 7")
                a.e("s_cbranch_scc1 L_CNT_RET")
                a.e("s_barrier")
                a.e("s_cmp_lg_u32 s97, 4")
                a.e("s_cbranch_scc0 L_CNT")
                a.label("L_CNT_RET")
            if mi == 0 or j == 0:
                a.wait(lds_tags=[("w", n, j), ("x", n, mi)])
            a.e(f"v_mfma_f32_16x16x32_bf16 v[{ACC(j,mi)}:{ACC(j,mi)+3}], v[{WF(n,j)}:{WF(n,j)+3}], v[{XF(n,mi)}:{XF(n,mi)+3}], v[{ACC(j,mi)}:{ACC(j,mi)+3}]")
            for k, sl in enumerate(slots):
                if sl == slot:
                    kind, arg = reads[k]
                    if kind == "w": read_w((n + 1) & 1, arg)
                    else: read_x((n + 1) & 1, arg)
a.e("s_add_u32 s66, s66, 1")
a.e("s_cmp_lt_u32 s66, 8")
a.e("s_cbranch_scc1 L_MAIN")
a.wait_all_lds()
a.e("s_barrier")
a.e("s_nop 7")
a.stamp(5)
T = 16
for ft in range(3):
    if ft == 2:
        a.e("s_cmp_lt_u32 s53, 3")
        a.e("s_cbranch_scc1 L_EPI_DONE")
    for pr in range(2):
        G, U = ACC(2 * ft, 2 * pr), ACC(2 * ft + 1, 2 * pr)
        t0 = T + 16 * pr
        p0 = t0 + 8
        ps = range(0, 8, 2)
        if 'nopk' not in OPT:
            for r in ps: a.e(f"v_pk_mul_f32 v[{t0+r}:{t0+r+1}], v[{G+r}:{G+r+1}], v[{G+r}:{G+r+1}]")
            for r in ps: a.e(f"v_pk_fma_f32 v[{t0+r}:{t0+r+1}], v[{t0+r}:{t0+r+1}], s[90:91], v[14:15]")
            for r in ps: a.e(f"v_pk_mul_f32 v[{t0+r}:{t0+r+1}], v[{t0+r}:{t0+r+1}], v[{G+r}:{G+r+1}]")
            for r in range(8): a.e(f"v_exp_f32 v{t0+r}, v{t0+r}")
            for r in ps: a.e(f"v_pk_mul_f32 v[{p0+r}:{p0+r+1}], v[{G+r}:{G+r+1}], v[{U+r}:{U+r+1}]")
            for r in ps: a.e(f"v_pk_add_f32 v[{t0+r}:{t0+r+1}], v[{t0+r}:{t0+r+1}], s[92:93]")
            for r in range(8): a.e(f"v_rcp_f32 v{t0+r}, v{t0+r}")
            a.e("s_nop 0")
            for r in ps: a.e(f"v_pk_mul_f32 v[{t0+r}:{t0+r+1}], v[{t0+r}:{t0+r+1}], v[{p0+r}:{p0+r+1}]")
        else:
            rs = range(8)
            for r in rs: a.e(f"v_mul_f32 v{t0+r}, v{G+r}, v{G+r}")
            for r in rs: a.e(f"v_fmamk_f32 v{t0+r}, v{t0+r}, 0x{f2u(C2):08x}, v14")
            for r in rs: a.e(f"v_mul_f32 v{t0+r}, v{t0+r}, v{G+r}")
            for r in rs: a.e(f"v_exp_f32 v{t0+r}, v{t0+r}")
            for r in rs: a.e(f"v_mul_f32 v{p0+r}, v{G+r}, v{U+r}")
            for r in rs: a.e(f"v_add_f32 v{t0+r}, 1.0, v{t0+r}")
            for r in rs: a.e(f"v_rcp_f32 v{t0+r}, v{t0+r}")
            a.e("s_nop 0")
            for r in rs: a.e(f"v_mul_f32 v{t0+r}, v{t0+r}, v{p0+r}")
        O = 64 + 8 * ft + 4 * pr
        for i in range(4): a.e(f"v_cvt_pk_bf16_f32 v{O+i}, v{t0+2*i}, v{t0+2*i+1}")
        a.e("s_nop 1")
        a.e(f"v_permlane16_swap_b32 v{O}, v{O+2}")
        a.e(f"v_permlane16_swap_b32 v{O+1}, v{O+3}")
        a.e(f"buffer_store_dwordx4 v[{O}:{O+3}], v12, s[20:23], s{94+ft} offen offset:{pr*2048} sc1")
a.label("L_EPI_DONE")
a.stamp(6)
a.e("s_waitcnt vmcnt(0)")
a.e("v_mov_b32 v88, 1")
a.e("s_mov_b64 exec, 1")
a.e("buffer_store_dword v88, v13, s[4:7], s61 offen sc1")
a.e("s_mov_b64 exec, -1")
a.e("s_setprio 0")

a.reset()
a.label("L_G2")
a.e("s_lshr_b32 s63, s54, 2")
a.e("v_lshrrev_b32 v21, 4, v1")
a.e("v_and_b32 v23, 1, v21")
a.e("v_bfe_u32 v22, v1, 2, 2")
a.e("v_lshl_add_u32 v22, v21, 3, v22")
a.e("v_lshlrev_b32 v22, 7, v22")
a.e("v_and_b32 v24, 1, v1")
a.e("v_lshl_add_u32 v22, v24, 3, v22")
a.e("v_bfe_u32 v24, v1, 1, 1")
a.e("v_lshl_add_u32 v22, v24, 4, v22")
a.e(f"s_mul_i32 s58, s55, {BUF}")
a.e("v_add_u32 v22, s58, v22")
a.e("v_bfe_u32 v24, v1, 3, 1")
a.e("v_lshl_add_u32 v24, v23, 1, v24")
a.e("v_lshlrev_b32 v24, 1, v24")
for j in range(4):
    a.e(f"v_xor_b32 v25, {2*j}, v24")
    a.e(f"v_lshl_add_u32 v{2+j}, v25, 4, v22")
a.e("v_lshlrev_b32 v14, 4, v1")
a.e("s_mov_b32 s65, s57")
a.e("s_mov_b32 s62, s65")
a.e("s_lshl_b32 s60, s65, 12")
a.e("s_add_u32 s58, s58, s60")
a.e("v_add_u32 v7, s58, v14")
a.e("s_add_u32 s64, s55, s98")
a.e("s_and_b32 s64, s64, 3")
a.e("s_mul_i32 s64, s64, 10")
a.e(f"s_mul_i32 s58, s55, {BUF}")
a.e("s_lshl_b32 s59, s63, 13")
a.e("s_add_u32 s58, s58, s59")
a.e("v_add_u32 v15, s58, v14")
a.e("s_lshl_b32 s58, s56, 12")
a.e("s_lshl_b32 s59, s63, 11")
a.e("s_add_u32 s58, s58, s59")
a.e("v_add_u32 v6, s58, v14")
a.e("v_and_b32 v24, 31, v1")
a.e("v_lshlrev_b32 v13, 2, v24")
a.e("v_lshrrev_b32 v24, 1, v24")
a.e("v_mul_u32_u24 v25, 43, v24")
a.e("v_add_u32 v26, 43, v25")
a.e("v_lshrrev_b32 v25, 4, v25")
a.e("v_lshrrev_b32 v26, 4, v26")
a.e("s_add_u32 s58, s64, 10")
a.e("v_cmp_gt_u32 s[90:91], s58, v25")
a.e("v_cmp_lt_u32 s[92:93], s64, v26")
a.e("s_and_b64 s[90:91], s[90:91], s[92:93]")
a.e("v_cmp_eq_u32 s[92:93], 15, v24")
a.e("s_or_b64 s[90:91], s[90:91], s[92:93]")
a.e("s_lshl_b32 s61, s56, 7")
a.e(f"s_add_u32 s61, s61, {H_BYTES}")
def HB(i, mi): return 96 + i * 8 + 4 * mi
def AFR(i, j): return 16 + (i & 1) * 16 + 4 * j
def ACC2(j, mi): return 48 + 16 * mi + 4 * j
def HS(i): return f"s{70+i if not DIAG else 8+i}"
def h_soff(i):
    if i < 10:
        a.e("s_add_u32 s58, s64, s65")
        a.e(f"s_lshl_b32 {HS(i)}, s58, 17")
        a.e("s_add_u32 s65, s65, 1")
        a.e("s_cmp_eq_u32 s65, 10")
        a.e("s_cselect_b32 s65, 0, s65")
    else:
        a.e("s_add_u32 s58, s55, 40")
        a.e(f"s_lshl_b32 {HS(i)}, s58, 17")
def h_loads(i):
    for mi in range(2):
        a.vm_op(f"buffer_load_dwordx4 v[{HB(i,mi)}:{HB(i,mi)+3}], v6, s[20:23], {HS(i)} offen offset:{mi*1024} sc1", ("h", i))
def a_addr(i):
    if i < 10:
        a.e("s_lshl_b32 s59, s62, 12")
        a.e("s_add_u32 s62, s62, 1")
        a.e("s_cmp_eq_u32 s62, 10")
        a.e("s_cselect_b32 s62, 0, s62")
        sreg = "s59"
    else: sreg = "s60"
    for j in range(4): a.e(f"v_add_u32 v{8+j}, {sreg}, v{2+j}")
def a_read(i, j):
    for hh in range(2):
        a.lds_op(f"ds_read_b64_tr_b16 v[{AFR(i,j)+2*hh}:{AFR(i,j)+2*hh+1}], v{8+j} offset:{hh*512}", ("a", i, j))
for i in range(11): h_soff(i)
a_addr(0)
a.e("s_waitcnt vmcnt(0)")
a.e("s_barrier")
a.stamp(7)
for j in range(4): a_read(0, j)
a.wait_all_lds()
a.e("s_barrier")
a.e("s_cmp_ge_u32 s54, 4")
a.e("s_cbranch_scc1 L_NOXW")
for q in range(4):
    a.e(f"ds_write_b128 v7, v[{XR+4*q}:{XR+4*q+3}] offset:{q*1024}")
a.e("s_waitcnt lgkmcnt(0)")
a.label("L_NOXW")
a.e("s_barrier")
if optval('dly', 0): a.e(f"s_sleep {optval('dly', 0)}")
a.label("L_POLL")
a.e("buffer_load_dword v12, v13, s[4:7], s61 offen sc1")
a.e("s_add_u32 s3, s3, 1")
a.e(f"s_cmp_gt_u32 s3, {SPIN}")
a.e("s_cbranch_scc1 L_POLLDONE")
a.e("s_waitcnt vmcnt(0)")
a.e("v_cmp_ne_u32 vcc, 1, v12")
a.e("s_and_b64 vcc, vcc, s[90:91]")
a.e("s_cbranch_vccnz L_POLL")
a.label("L_POLLDONE")
a.stamp(8)
NW = optval('nw', 3)
AD = optval('ad', 1)
for i in range(min(NW, 11)): h_loads(i)
if AD == 2:
    a_addr(1)
    for j in range(4): a_read(1, j)
for i in range(11):
    if i + AD < 11: a_addr(i + AD)
    a.wait(vm_tags=[("h", i)])
    if i == 0: a.stamp(9)
    for j in range(4):
        a.wait(lds_tags=[("a", i, j)])
        for mi in range(2):
            cin = "0" if i == 0 else f"v[{ACC2(j,mi)}:{ACC2(j,mi)+3}]"
            a.e(f"v_mfma_f32_16x16x32_bf16 v[{ACC2(j,mi)}:{ACC2(j,mi)+3}], v[{AFR(i,j)}:{AFR(i,j)+3}], v[{HB(i,mi)}:{HB(i,mi)+3}], {cin}")
            if mi == 0 and i + AD < 11: a_read(i + AD, j)
        if j == optval('hj', 1) and i + NW < 11: h_loads(i + NW)
a.stamp(10)
a.e("s_barrier")
a.e("s_nop 7")
for mi in range(2):
    for j in range(4):
        a.e(f"ds_write_b128 v15, v[{ACC2(j,mi)}:{ACC2(j,mi)+3}] offset:{mi*4096 + j*1024}")
a.e("s_lshl_b32 s58, s55, 12")
a.e("s_lshl_b32 s59, s63, 11")
a.e("s_add_u32 s58, s58, s59")
a.e("v_add_u32 v8, s58, v14")
a.e(f"v_add_u32 v9, {2*BUF}, v8")
a.e("s_lshl_b32 s58, s56, 6")
a.e("s_lshl_b32 s59, s55, 4")
a.e("s_add_u32 s58, s58, s59")
a.e("s_lshl_b32 s58, s58, 10")
a.e("s_lshl_b32 s59, s57, 7")
a.e("s_add_u32 s58, s58, s59")
a.e("s_lshl_b32 s59, s63, 6")
a.e("s_add_u32 s58, s58, s59")
a.e("v_and_b32 v10, 15, v1")
a.e("v_lshlrev_b32 v10, 10, v10")
a.e("v_bfe_u32 v11, v1, 4, 1")
a.e("v_lshl_add_u32 v10, v11, 5, v10")
a.e("v_lshrrev_b32 v11, 5, v1")
a.e("v_lshl_add_u32 v10, v11, 4, v10")
a.wait_all_lds()
a.e("s_barrier")
for src in range(4):
    for jj in range(2):
        r = 96 + 8 * src + 4 * jj
        a.e(f"ds_read_b128 v[{r}:{r+3}], v{8 + (src >> 1)} offset:{(src & 1)*BUF + jj*1024}")
a.e("s_waitcnt lgkmcnt(4)")
for k in range(0, 8, 2): a.e(f"v_pk_add_f32 v[{96+k}:{97+k}], v[{96+k}:{97+k}], v[{104+k}:{105+k}]")
a.e("s_waitcnt lgkmcnt(0)")
for k in range(0, 8, 2): a.e(f"v_pk_add_f32 v[{112+k}:{113+k}], v[{112+k}:{113+k}], v[{120+k}:{121+k}]")
for k in range(0, 8, 2): a.e(f"v_pk_add_f32 v[{96+k}:{97+k}], v[{96+k}:{97+k}], v[{112+k}:{113+k}]")
for k in range(4): a.e(f"v_cvt_pk_bf16_f32 v{16+k}, v{96+2*k}, v{96+2*k+1}")
a.e("s_nop 1")
a.e("v_permlane16_swap_b32 v16, v18")
a.e("v_permlane16_swap_b32 v17, v19")
OUTF = ' sc1' if 'outsc1' in OPT else ' nt' if 'outnt' in OPT else ''
a.e(f"buffer_store_dwordx4 v[16:19], v10, s[28:31], s58 offen{OUTF}")
a.dump_stamps(11)
a.label("L_END")
a.e("s_endpgm")
a.label("L_CNT")
a.e("s_mov_b32 s97, 0")
a.e("v_mov_b32 v197, 1")
a.e("s_lshl_b32 s58, s50, 4")
a.e("s_waitcnt vmcnt(0)")
a.e("s_mov_b64 exec, 1")
a.e("buffer_store_dword v197, v13, s[32:35], s58 offen sc1")
a.e("s_mov_b64 exec, -1")
a.e("s_branch L_CNT_RET")
a.label("L_CODE_END")

HDR = open("standalone__glu_gated_geglu__prompt.s.ref").read().split("; Override")[0]
out = HDR + "; @launch grid=(256,1,1) block=(512,1,1) lds=163840\n"
out += f'.amdgcn_target "amdgcn-amd-amdhsa--gfx950"\n.text\n.globl {KN}\n.p2align 8\n.type {KN},@function\n'
out += f".set CODE_END_OFF, L_CODE_END - {KN} - 1024\n"
out += ".set CODE_END_OFF2, L_CODE_END - L_COMPUTE - 64\n"
out += a.text() + f"""
.section .rodata,"a"
.p2align 6
.amdhsa_kernel {KN}
  .amdhsa_next_free_vgpr 256
  .amdhsa_next_free_sgpr 102
  .amdhsa_accum_offset 256
  .amdhsa_group_segment_fixed_size 0
  .amdhsa_kernarg_size 56
  .amdhsa_user_sgpr_count 2
  .amdhsa_user_sgpr_kernarg_segment_ptr 1
  .amdhsa_system_sgpr_workgroup_id_x 1
.end_amdhsa_kernel
"""
open(sys.argv[1], "w").write(out)
```
